```python
import torch

def _softmax(x, axis=-1):
    return torch.softmax(x, dim=axis)

def _gelu(x):
    return torch.nn.functional.gelu(x, approximate='tanh')

def _silu(x):
    return torch.nn.functional.silu(x)

def _sigmoid(x):
    return torch.sigmoid(x)

def _layernorm(x, axis=-1, eps=1e-05):
    m = x.mean(dim=axis, keepdim=True)
    v = x.var(dim=axis, keepdim=True, unbiased=False)
    return (x - m) / torch.sqrt(v + eps)

def _scatter_add(tgt, idx, src, axis=0):
    return tgt.clone().index_add_(axis, idx, src)

def _segment_sum(src, seg, n):
    out = torch.zeros((n,) + src.shape[1:], dtype=src.dtype)
    return out.index_add_(0, seg, src)

def _pad(x, pw):
    flat = tuple((v for pair in reversed(pw) for v in pair))
    return torch.nn.functional.pad(x, flat)
kernel_name = 'gated_mix__linear_attn_block__memory_aug_recurrent_mem_tr__prompt'

def setup_inputs():

    _w = lambda a: (lambda t: t.to(torch.bfloat16) if t.is_floating_point() else t)(torch.as_tensor(a))

    def _A_setup():
        B, S, D = (1, 2048, 640)
        return {'x': _w((lambda *s: torch.randn(*s, dtype=torch.bfloat16) * 0.05)(B, S, D)), 'wqkv': _w((lambda *s: torch.randn(*s, dtype=torch.bfloat16) * 1.6)(D, 3 * D)), 'wo': _w((lambda *s: torch.randn(*s, dtype=torch.bfloat16) * 0.1)(D, D))}
    _A_in = _A_setup()

    def _B_setup():
        B, S, Dm = (1, 2048, 640)
        H, Dh = (32, 192)
        M, seg = (8, 32)
        seg = min(seg, S)
        S = S // seg * seg
        return {'x': _w((lambda *s: torch.randn(*s, dtype=torch.bfloat16) * 0.05)(B, S, Dm)), 'mem0': _w((lambda *s: torch.randn(*s, dtype=torch.bfloat16) * 0.8)(B, M, Dm)), 'Wq': _w((lambda *s: torch.randn(*s, dtype=torch.bfloat16) * 3.2)(Dm, H, Dh) * Dm ** (-0.5)), 'Wk': _w((lambda *s: torch.randn(*s, dtype=torch.bfloat16) * 3.2)(Dm, H, Dh) * Dm ** (-0.5)), 'Wv': _w((lambda *s: torch.randn(*s, dtype=torch.bfloat16) * 0.8)(Dm, H, Dh) * Dm ** (-0.5)), 'Wo': _w((lambda *s: torch.randn(*s, dtype=torch.bfloat16) * 0.8)(H, Dh, Dm) * (H * Dh) ** (-0.5)), 'seg_len': seg}
    _B_in = _B_setup()
    return {'A_x': _A_in['x'], 'A_wqkv': _A_in['wqkv'], 'A_wo': _A_in['wo'], 'B_x': _B_in['x'], 'B_mem0': _B_in['mem0'], 'B_Wq': _B_in['Wq'], 'B_Wk': _B_in['Wk'], 'B_Wv': _B_in['Wv'], 'B_Wo': _B_in['Wo'], 'B_seg_len': _B_in['seg_len'], 'gate_w': _w((lambda *s: torch.randn(*s, dtype=torch.bfloat16) * 0.05)(640) * 16.0)}

def reference(A_x, A_wqkv, A_wo, B_x, B_mem0, B_Wq, B_Wk, B_Wv, B_Wo, B_seg_len, gate_w):

    def _A_ref(x, wqkv, wo):
        B, S, D = x.shape
        H = 32
        Dh = D // H
        qkv = (lambda x, *d: x.permute(*d))((x @ wqkv).reshape(B, S, 3, H, Dh), 2, 0, 3, 1, 4)
        q, k, v = (qkv[0], qkv[1], qkv[2])
        phi = lambda t: torch.where(t > 0, t + 1, torch.exp(t)) + 1e-06
        pq, pk = (phi(q), phi(k))
        kv = torch.einsum('bhsd,bhse->bhde', pk, v)
        z = torch.einsum('bhsd->bhd', pk)
        num = torch.einsum('bhqd,bhde->bhqe', pq, kv)
        den = torch.einsum('bhqd,bhd->bhq', pq, z)[..., None] + 1e-06
        o = num / den
        return (lambda x, *d: x.permute(*d))(o, 0, 2, 1, 3).reshape(B, S, D) @ wo

    def _B_ref(x, mem0, Wq, Wk, Wv, Wo, seg_len):
        B, S, Dm = x.shape
        H, Dh = (Wq.shape[1], Wq.shape[2])
        M = mem0.shape[1]
        scale = Dh ** (-0.5)
        n_seg = S // seg_len
        L = M + seg_len
        idx = torch.arange(L)
        mask = (idx[:, None] < M) | (idx[:, None] >= idx[None, :])
        mem = mem0
        outs = []
        for s in range(n_seg):
            xs = x[:, s * seg_len:(s + 1) * seg_len, :].clone()
            h = torch.concatenate([mem, xs], axis=1)
            q = torch.einsum('btd,dhe->bhte', h, Wq)
            k = torch.einsum('btd,dhe->bhte', h, Wk)
            v = torch.einsum('btd,dhe->bhte', h, Wv)
            scores = torch.einsum('bhqe,bhke->bhqk', q, k) * scale
            scores = torch.where(mask[None, None], scores, -1000000000.0)
            p = _softmax(scores, axis=-1)
            o = torch.einsum('bhqk,bhke->bhqe', p, v)
            o = torch.einsum('bhte,hed->btd', o, Wo)
            mem = o[:, :M, :].clone()
            outs.append(o[:, M:, :])
        return torch.concatenate(outs, axis=1)
    x = A_x
    g = _sigmoid((x * gate_w).sum(-1, keepdims=True))
    a = _A_ref(x, A_wqkv, A_wo)
    b = _B_ref(x, B_mem0, B_Wq, B_Wk, B_Wv, B_Wo, B_seg_len)
    return g * a + (1 - g) * b
```

```python
class Asm:
    def __init__(self):
        self.lines = []
        self.uid = 0
    def __call__(self, s=''):
        for ln in s.split('\n'):
            self.lines.append(ln.strip() if ln.strip().endswith(':') else '    ' + ln.strip())
    def label(self, name):
        self.lines.append(name + ':')
    def newlabel(self, base):
        self.uid += 1
        return f'{base}_{self.uid}'
    def raw(self, s):
        self.lines.append(s)
    def text(self):
        return '\n'.join(self.lines) + '\n'

def vr(b, n=1):
    return f'v{b}' if n == 1 else f'v[{b}:{b+n-1}]'
def ar(b, n=1):
    return f'a{b}' if n == 1 else f'a[{b}:{b+n-1}]'
def sr(b, n=1):
    return f's{b}' if n == 1 else f's[{b}:{b+n-1}]'
def reg(b, n=1):
    if b < 256:
        assert b + n <= 256
        return vr(b, n)
    return ar(b - 256, n)

def kernel_header(name):
    return f'''.text
.globl {name}
.p2align 8
.type {name},@function
{name}:
'''
def kernel_desc(name, vgpr=512, sgpr=102, accum=256, kernarg=112):
    return f'''.section .rodata,"a"
.p2align 6
.amdhsa_kernel {name}
  .amdhsa_next_free_vgpr {vgpr}
  .amdhsa_next_free_sgpr {sgpr}
  .amdhsa_accum_offset {accum}
  .amdhsa_group_segment_fixed_size 0
  .amdhsa_kernarg_size {kernarg}
  .amdhsa_user_sgpr_count 2
  .amdhsa_user_sgpr_kernarg_segment_ptr 1
  .amdhsa_system_sgpr_workgroup_id_x 1
  .amdhsa_float_denorm_mode_32 3
.end_amdhsa_kernel
'''
```

```python
import re
def regs(op):
    op = op.strip()
    op = op.lstrip('-')
    m = re.fullmatch(r'abs\((.*)\)|\|(.*)\|', op)
    if m: op = m.group(1) or m.group(2)
    m = re.fullmatch(r'([vas])(\d+)', op)
    if m: return {(m.group(1), int(m.group(2)))}
    m = re.fullmatch(r'([vas])\[(\d+):(\d+)\]', op)
    if m: return {(m.group(1), i) for i in range(int(m.group(2)), int(m.group(3)) + 1)}
    if op == 'vcc': return {('s', 106), ('s', 107)}
    if op == 'exec': return {('s', 126), ('s', 127)}
    if op == 'm0': return {('s', 124)}
    return set()
TRANS = ('v_exp_', 'v_log_', 'v_rcp_', 'v_rsq_', 'v_sqrt_', 'v_sin_', 'v_cos_')
class I:
    def __init__(s, text, ln):
        s.text = text; s.ln = ln
        t = text.split(';')[0].strip()
        p = t.split(None, 1); s.mn = p[0]; rest = p[1] if len(p) > 1 else ''
        ops = [o.strip() for o in re.split(r',(?![^\[]*\])', rest)] if rest else []
        s.mods = ''
        if ops:
            q = ops[-1].split(None, 1); ops[-1] = q[0]; s.mods = q[1] if len(q) > 1 else ''
        s.ops = ops; mn = s.mn
        R = [regs(o) for o in ops]
        U = lambda l: set().union(*l) if l else set()
        s.mfma = mn.startswith('v_mfma') or mn.startswith('v_smfmac')
        s.valu = mn.startswith('v_') and not s.mfma
        s.vmem = mn.startswith('buffer_') or mn.startswith('global_')
        s.ds = mn.startswith('ds_')
        s.salu = mn.startswith('s_')
        s.w = set(); s.r = set(); s.ab = set(); s.c = set(); s.sdata = set()
        s.ws = 1
        if mn == 's_nop': s.ws = int(ops[0], 0) + 1
        if s.mfma:
            s.passes = 8 if '32x32' in mn else 4
            s.w = R[0]; s.ab = R[1] | R[2]
            if mn.startswith('v_smfmac'): s.c = R[0]; s.ab |= R[3]
            else: s.c = R[3]
            s.r = s.ab | s.c
        elif s.valu:
            s.dpp = '_dpp' in mn or 'quad_perm' in s.mods or 'row_' in s.mods
            s.perm = mn.startswith('v_permlane')
            s.trans = mn.startswith(TRANS)
            if mn.startswith('v_swap') or s.perm: s.w = R[0] | R[1]; s.r = R[0] | R[1]
            else:
                s.w = R[0]; s.r = U(R[1:])
                if mn.startswith(('v_fmac', 'v_writelane')) or s.dpp: s.r |= R[0]
                if mn.startswith(('v_add_co', 'v_addc_co', 'v_sub_co')): s.w |= R[1]; s.r = U(R[2:])
        elif s.vmem:
            lds = 'lds' in s.mods.split()
            s.ldsdma = lds
            if 'load' in mn:
                if lds: s.r = U(R) | {('s', 124)}
                else: s.w = R[0]; s.r = U(R[1:])
            else:
                s.r = U(R); s.sdata = R[0] if ('x4' in mn or 'x3' in mn) else set()
                if 'atomic' in mn and 'sc0' in s.mods: s.w = R[0]
        elif s.ds:
            if 'read' in mn or 'permute' in mn: s.w = R[0]; s.r = U(R[1:])
            else: s.r = U(R)
        elif s.salu:
            if mn.startswith(('s_cmp', 's_cbranch', 's_branch', 's_waitcnt', 's_nop', 's_barrier', 's_endpgm', 's_sleep', 's_setprio', 's_bitcmp')): s.r = U(R)
            else: s.w = R[0] if R else set(); s.r = U(R[1:])
            if 'saveexec' in mn: s.w |= {('s', 126), ('s', 127)}
def vonly(x): return {r for r in x if r[0] != 's'}
def sonly(x): return {r for r in x if r[0] == 's'}
def need(p, c):
    n = 0
    if p.valu:
        pv = vonly(p.w); ps = sonly(p.w)
        if c.mfma and pv & c.r: n = max(n, 2)
        if c.valu:
            if c.dpp and pv & c.r: n = max(n, 2)
            if c.perm and pv & c.r: n = max(n, 2)
            if c.mn.startswith(('v_readlane', 'v_readfirstlane')) and pv & c.r: n = max(n, 1)
            if p.trans and not c.trans and pv & c.r: n = max(n, 1)
            if ps & c.r: n = max(n, 2)
            if c.mn.startswith(('v_readlane', 'v_writelane')) and ps & c.r: n = max(n, 4)
        if p.trans and (c.vmem or c.ds or c.mfma) and pv & c.r: n = max(n, 1)
        if c.vmem and ps & c.r: n = max(n, 5)
    if p.mfma:
        big = {4: 8, 8: 12}[p.passes]
        if c.mfma:
            if p.w & c.ab: n = max(n, big)
            if p.w & c.c and not (p.w == c.c and p.passes == c.passes): n = max(n, big - 2)
            if p.w & c.w and not (p.w & c.c): n = max(n, 0)
        elif c.valu or c.vmem or c.ds:
            if p.w & (c.r | c.w): n = max(n, big)
            if c.valu and p.c & c.w: n = max(n, {4: 3, 8: 7}[p.passes])
    if p.vmem and p.sdata and (p.sdata & c.w):
        n = max(n, 2 if c.valu else 1)
    if p.salu and ('s', 124) in p.w and c.vmem and getattr(c, 'ldsdma', False): n = max(n, 1)
    return n
def check(text, W=14):
    ins = []; labels = {}
    for ln, l in enumerate(text.split('\n'), 1):
        t = l.split(';')[0].strip()
        if not t or t.startswith('.'): continue
        if t.endswith(':'): labels[t[:-1]] = len(ins); continue
        ins.append(I(t, ln))
    errs = set()
    def succ(i):
        x = ins[i]
        if x.mn == 's_endpgm': return []
        if x.mn == 's_branch': return [labels[x.ops[0]]]
        if x.mn.startswith('s_cbranch'): return [i + 1, labels[x.ops[0]]]
        return [i + 1]
    for i, p in enumerate(ins):
        if not (p.valu or p.mfma or p.vmem or (p.salu and ('s', 124) in p.w)): continue
        stack = [(j, 0, 4, 4*p.passes if p.mfma else 0) for j in succ(i)]; seen = set()
        while stack:
            j, d, t, pf = stack.pop()
            if j >= len(ins) or d >= W or (j, d, t, pf) in seen: continue
            seen.add((j, d, t, pf))
            c = ins[j]
            if c.mfma:
                t = max(t, pf); pf = t + 4*c.passes
            n = need(p, c)
            if n > d and not (p.mfma and t >= 4*(n+2)): errs.add((p.ln, c.ln, n, d, p.text, c.text))
            for k in succ(j): stack.append((k, d + c.ws, t + 4*c.ws, pf))
    return sorted(errs)
if __name__ == '__main__':
    import sys
    e = check(open(sys.argv[1]).read())
    for x in e: print('line %d -> %d need %d have %d: %s  ==>  %s' % x)
    print(len(e), 'hazards')
```

```python
from mk import *
SCALE = 192 ** -0.5 * 1.4426950408889634
import struct as _st
def f2u(x): return _st.unpack('<I', _st.pack('<f', x))[0]
WL, RING = 28672, 114688

def stepbase(g, dst, step):
    g(f'''s_lshr_b32 s30, {step}, 1
    s_xor_b32 s30, s30, s35
    s_and_b32 s30, s30, 1
    s_lshl_b32 s30, s30, 13
    s_lshl_b32 {dst}, {step}, 20
    s_add_u32 {dst}, {dst}, s30
    s_add_u32 {dst}, {dst}, {MB}''')
def get_home(g, fr, va):
    g(f'v_mov_b32 v{va}, {F_HOME*128}')
    g.flagwait(fr, va, 1)
    g(f'v_readfirstlane_b32 s35, v{fr}\ns_sub_u32 s35, s35, 1')
def wait_ready(g, fr, va):
    g(f'v_min_u32 v{va}, 39, v0\nv_lshlrev_b32 v{va}, 7, v{va}\nv_add_u32 v{va}, {F_RDY*128}, v{va}')
    g.flagwait(fr, va, 1)
def tickwait(g, vt, va, base):
    L = g.newlabel('L_tk'); d = g.cfg.get('tdepth', 4)
    g(f's_waitcnt vmcnt(0)\nv_not_b32 v{vt}, {sNON}\n{L}:\nbuffer_load_dword v{vt}, v{va}, {WS}, {base} offen sc1')
    g.spin()
    g(f's_waitcnt vmcnt({d-1})\nv_cmp_ne_u32 vcc, {sNON}, v{vt}\ns_cbranch_vccnz {L}')
def idx_setup(g, v):
    g(f'v_mov_b32 v1, 0x4444\nv_mov_b32 v2, 0xeeee\nv_and_b32 v3, 8, v0\nv_cmp_eq_u32 vcc, 0, v3\ns_nop 1\nv_cndmask_b32 v{v}, v2, v1, vcc')
def mem_ld(k, A0): return f'buffer_load_dwordx4 v[{A0+4*k}:{A0+4*k+3}], v{4 + k//4}, {WS}, s36 offen offset:{(k % 4)*1024} sc1'
def pace(g): return g.cfg.get('pace', 's_sleep 1')
def sentinel_poll(g, loads, regs, lab, tmp):
    g(f'{lab}:')
    for x in loads: g(x)
    g.spin(); g('s_waitcnt vmcnt(0)')
    g(f'v_mov_b32 v{tmp}, 0')
    for r in regs:
        if r[0] == 'a':
            g(f'v_accvgpr_read_b32 v{tmp+1}, a{r[1]}\nv_max_u32 v{tmp}, v{tmp}, v{tmp+1}')
        else: g(f'v_max_u32 v{tmp}, v{tmp}, v{r[1]}')
    g(f'v_cmp_eq_u32 vcc, -1, v{tmp}\ns_cbranch_vccnz {lab}')
def count_miss(g):
    if g.cfg.get('prof'): g('s_add_u32 s97, s97, 1')
def log_miss(g, slot):
    if g.cfg.get('prof'): g(f's_mul_i32 s97, s97, 100\nv_mov_b32 v3, s97\nbuffer_store_dword v3, v2, {WS}, 0 offen offset:{slot*4}\ns_waitcnt vmcnt(0)')

class VM:
    def __init__(s): s.q = []
    def add(s, tag): s.q.append(tag)
    def wait(s, tag): return f's_waitcnt vmcnt({min(63, len(s.q) - 1 - s.q.index(tag))})'

def role_r(g):
    c = g.cfg
    g(f'''L_r:
    s_cmp_lg_u32 {sW}, 0
    s_cbranch_scc1 L_end
    s_mul_i32 s40, {sX}, 10
    s_add_u32 s40, s40, {sIDX}
    s_sub_u32 s40, s40, 16
    s_mov_b32 s97, 0
    v_mov_b32 v25, {sNON}
    s_cmp_lg_u32 s40, 0
    s_cbranch_scc1 L_r_nop''')
    g(f'v_mov_b32 v1, {MB + 0xF0000}\ns_mov_b32 s44, -1\ns_mov_b32 s45, -1')
    for it in range(c.get('nprobe', 6)):
        for b in range(2):
            g(f'''s_memtime s[46:47]
            s_waitcnt lgkmcnt(0)
            buffer_store_dword v25, v1, {WS}, 0 offen sc1
            s_waitcnt vmcnt(0)
            s_memtime s[48:49]
            s_waitcnt lgkmcnt(0)
            s_sub_u32 s46, s48, s46
            s_min_u32 s{44+b}, s{44+b}, s46
            v_xor_b32 v1, 0x2000, v1''')
    g(f'''s_cmp_lt_u32 s44, s45
    s_cselect_b32 s46, 1, 2''')
    if 'home' in c: g(f's_mov_b32 s46, {c["home"]+1}')
    if c.get('prof'): g(f'v_mov_b32 v1, 16\nv_mov_b32 v2, s44\nv_mov_b32 v3, s45\nbuffer_store_dwordx2 v[2:3], v1, {S3}, 0 offen sc1')
    g(f's_mov_b32 s30, {F_HOME}'); g.flagaddr_own(26, None); g.flagstore(24, 26, 's46')
    g('L_r_nop:')
    idx_setup(g, 27)
    g(f'v_lshlrev_b32 v2, 4, v0')
    for q in range(5): g(f'v_add_u32 v{4+q}, {mapL(L_P + q*4096)}, v2')
    g(f'''s_add_u32 s30, s40, 4
    s_lshl_b32 s30, s30, 14
    v_add_u32 v9, s30, v2
    v_add_u32 v10, 4096, v9
    v_mov_b32 v28, v2''')
    g(f'''v_lshrrev_b32 v1, 4, v0
    v_and_b32 v2, 1, v1
    v_lshlrev_b32 v2, 2, v2
    v_and_b32 v1, 2, v1
    v_add_u32 v1, v1, v2
    v_and_b32 v2, 1, v0
    v_add_u32 v1, v1, v2
    v_bfe_u32 v2, v0, 1, 3
    v_mul_u32_u24 v18, 1280, v1
    v_lshl_add_u32 v18, v2, 2, v18
    s_lshl_b32 s30, s40, 5
    v_add_u32 v18, s30, v18
    v_and_b32 v3, 1, v2
    v_lshl_add_u32 v1, v3, 3, v1
    v_lshrrev_b32 v2, 1, v2
    v_lshlrev_b32 v2, 2, v2
    v_lshl_add_u32 v11, v1, 4, v2
    s_lshl_b32 s30, s40, 8
    s_lshr_b32 s31, s40, 5
    s_lshl_b32 s31, s31, 13
    s_add_u32 s41, s30, s31
    v_add_u32 v11, s41, v11
    v_mov_b32 v1, 0x01000504
    v_mov_b32 v2, 0x07060302
    v_and_b32 v3, 1, v0
    v_cmp_eq_u32 vcc, 0, v3
    s_nop 1
    v_cndmask_b32 v19, v2, v1, vcc''')
    g(f'''s_lshl_b32 s30, s40, 9
    s_add_u32 s30, s30, {L_P}
    s_lshr_b32 s31, s30, 13
    s_lshl_b32 s31, s31, 13
    s_add_u32 s30, s30, s31
    v_add_u32 v1, s30, v28
    s_sub_u32 s30, s41, 512
    v_add_u32 v2, s30, v28
    v_cmp_gt_u32 vcc, 32, v0
    s_nop 1
    v_cndmask_b32 v29, v2, v1, vcc
    v_mov_b32 v1, {OOB}
    v_cmp_gt_u32 vcc, 48, v0
    s_nop 1
    v_cndmask_b32 v29, v1, v29, vcc
    s_lshl_b32 s30, {sX}, 7
    v_mov_b32 v12, {mapL(L_TW)}
    v_add_u32 v12, s30, v12
    v_add_u32 v13, {L_TX - L_TW}, v12
    v_lshlrev_b32 v14, 7, v0
    v_add_u32 v14, {mapL(L_TX)}, v14
    v_lshrrev_b32 v2, 2, v0
    v_or_b32 v2, s40, v2
    v_cmp_eq_u32 vcc, 0, v2
    s_nop 1
    v_cndmask_b32 v14, v1, v14, vcc
    v_and_b32 v15, 31, v0
    v_lshlrev_b32 v15, 7, v15
    s_lshl_b32 s30, {sX}, 3
    s_add_u32 s30, s30, {F_U*128}
    v_add_u32 v15, s30, v15''')
    for i in range(4): g(f'v_mov_b32 v{112+i}, -1')
    get_home(g, 16, 1)
    def clear(base):
        for i in range(8): g(f'buffer_store_dwordx4 v[112:115], v{9 + i//4}, {WS}, {base} offen offset:{(i % 4)*1024} sc1')
        g(f'buffer_store_dwordx4 v[112:115], v29, {WS}, {base} offen sc1')
    g.srd(12, P_MEM0, 10240)
    g(f'buffer_load_dword v20, v18, {S1}, 0 offen')
    for st in (2, 1, 0):
        g(f's_mov_b32 s42, {st}'); stepbase(g, 's36', 's42'); clear('s36')
    g(f's_waitcnt vmcnt(0)\nbuffer_store_dword v20, v11, {WS}, s36 offen sc1\ns_add_u32 s30, s40, {F_RDY}')
    g.flagaddr_own(26, None)
    g('s_waitcnt vmcnt(0)'); g.flagstore(24, 26, 1)
    g(f's_lshl_b32 s43, s40, 15\ns_add_u32 s43, s43, {UX}\nv_mov_b32 v16, 0')
    def uxload():
        for h in range(32):
            g(f'buffer_load_dwordx4 a[{4*h}:{4*h+3}], v28, {WS}, s43 offen offset:{(h % 4)*1024} sc1')
            if h % 4 == 3: g(f's_add_u32 s43, s43, {4096 if h < 31 else 40*32768 - 7*4096}')
    g.flagwait(16, 15, 1); uxload()
    g.prof(1)
    um = [f'buffer_load_dwordx4 a[{128+4*i}:{131+4*i}], v{9 + i//4}, {WS}, s36 offen offset:{(i % 4)*1024} sc1' for i in range(8)]
    pl = [f'buffer_load_dwordx4 v[{32+4*f}:{35+4*f}], v{4 + f//4}, {WS}, s36 offen offset:{(f % 4)*1024} sc1' for f in range(20)]
    g('L_r_step:\ns_add_u32 s44, s42, 1'); stepbase(g, 's37', 's44')
    g('s_mov_b64 s[38:39], -1')
    for i in range(4): g(f'v_mov_b32 v{20+i}, 0')
    tickwait(g, 30, 12, 's36')
    g('L_r_go:')
    vm = VM()
    for i, x in enumerate(um): g(x); vm.add(('u', i))
    for f, x in enumerate(pl): g(x); vm.add(f)
    tick = f'buffer_store_dword v25, v14, {WS}, s37 offen sc1'
    tX = c.get('tX', 10)
    for f in range(20):
        g(vm.wait(f))
        g(f'v_smfmac_f32_16x16x64_bf16 v[20:23], v[{32+4*f}:{35+4*f}], a[{8*f}:{8*f+7}], v27')
        if f == tX: g(tick); vm.add('t')
    g(f'''s_nop 7
    v_permlane32_swap_b32 v20, v22
    v_permlane32_swap_b32 v21, v23
    v_add_f32 v20, v20, v22
    v_add_f32 v21, v21, v23
    v_cvt_pk_bf16_f32 v22, v20, v21
    v_cmp_u_f32 vcc, v20, v21
    s_and_b64 vcc, vcc, s[38:39]
    v_mov_b32_dpp v23, v22 quad_perm:[1,0,3,2] row_mask:0xf bank_mask:0xf
    s_cbranch_scc1 L_r_slow
    v_perm_b32 v22, v22, v23, v19
    buffer_store_dword v22, v11, {WS}, s37 offen sc1''')
    if tX >= 20: g(tick)
    g(f'''s_cmp_eq_u32 s42, 62
    s_cbranch_scc1 L_r_done''')
    tickwait(g, 30, 13, 's37')
    for _ in range(c.get('rdelay', 1)): g('s_sleep 4')
    g('s_add_u32 s45, s42, 2')
    g.flagwait(16, 15, 's45', cached=True)
    uxload()
    g('s_add_u32 s45, s42, 3'); stepbase(g, 's36', 's45')
    g(f's_cmp_gt_u32 s45, 63\ns_cselect_b32 s36, {OOB}, s36')
    clear('s36')
    g('s_mov_b32 s36, s37\ns_mov_b32 s42, s44\ns_branch L_r_step')
    g('L_r_done:'); g.prof(2); log_miss(g, 1); g('s_endpgm')
    g('L_r_slow:'); count_miss(g)
    sentinel_poll(g, um + pl, [('a', 128+i) for i in range(32)] + [('v', 32+i) for i in range(80)], 'L_r_sp', 116)
    g('s_mov_b64 s[38:39], 0')
    for i in range(4): g(f'v_mov_b32 v{20+i}, 0')
    g('s_branch L_r_go')

def ab_common(g, first):
    g(f'''s_lshl_b32 s40, {sX}, 3
    s_add_u32 s40, s40, {sIDX}
    s_sub_u32 s40, s40, {first}
    s_mov_b32 s97, 0
    s_mul_i32 s43, s40, 384
    s_mul_i32 s32, {sW}, 12288
    s_add_u32 s32, s32, {RING}
    s_mul_i32 s41, {sW}, {WL}''')
def ab_addr(g):
    g(f'''v_lshlrev_b32 v4, 4, v0
    v_add_u32 v5, 4096, v4
    v_add_u32 v6, 16384, v4
    v_add_u32 v7, s41, v4
    s_lshl_b32 s30, {sX}, 7
    s_add_u32 s30, s30, {mapL(L_TX)}
    v_mov_b32 v9, s30''')
    idx_setup(g, 8)
class Place:
    def __init__(s, order, ldsset, V0=144, ST=96):
        s.loc = {}; s.lds = [o for o in order if o in ldsset]; s.ST = ST
        n = 0
        for o in order:
            if o in ldsset: continue
            s.loc[o] = 256 + 8*n if n < 32 else V0 + 8*(n-32); n += 1
        assert n <= 32 + (256 - V0)//8
    def reg(s, o):
        if o in s.loc: return reg(s.loc[o], 8)
        return vr(s.ST + 8*(s.lds.index(o) % 3), 8)
    def stage(s, i):
        b = s.ST + 8*(i % 3)
        return [f'ds_read_b128 v[{b+4*u}:{b+4*u+3}], v7 offset:{i*2048 + u*1024}' for u in range(2)]
def w192_ops(g, pl, mats, opof, VO=20, VT=23, VW=24, TMP=32):
    g.w192_setup(VO, VT, 's32')
    g(f'v_lshlrev_b32 v{VW}, 4, v0\nv_add_u32 v{VW}, s41, v{VW}')
    U = [(mi, kk) for mi in range(len(mats)) for kk in range(20)]
    def reads(u):
        mi, kk = U[u]; out = []
        for t in range(3):
            o = opof(mi, t, kk//2)
            b = pl.loc[o] + 4*(kk % 2) if o in pl.loc else TMP + 4*t
            out += [(reg(b + 2*q, 2), t*32 + q*384) for q in range(2)]
        return out
    def post(u):
        mi, kk = U[u]
        for t in range(3):
            o = opof(mi, t, kk//2)
            if o not in pl.loc: g(f'ds_write_b128 v{VW}, v[{TMP+4*t}:{TMP+4*t+3}] offset:{pl.lds.index(o)*2048 + (kk % 2)*1024}')
    g.wload([f's_add_u32 s33, s43, {kk*32*12288}' for mi, kk in U], 3, VO, [mats[mi] for mi, kk in U], 's32', 3072, 4, VT, reads, post)
    g('s_waitcnt lgkmcnt(0)')
def staged(pl, order, fill, pre):
    n = len(pl.lds)
    for i, o in enumerate(pl.lds):
        p = order.index(o)
        pre.setdefault(p, []).append(f's_waitcnt lgkmcnt({2*min(2, n-1-i)})')
        if i + 3 < n:
            st = pl.stage(i+3); fill.setdefault(p, []).append(st[0]); fill.setdefault(p+1, []).insert(0, st[1])

def role_b(g):
    c = g.cfg
    g('L_b:'); ab_common(g, 8)
    g.srd(12, P_WV, SZ_W); g.srd(16, P_WO, SZ_W)
    o1 = [('v', t, k) for k in range(10) for t in range(3)]
    o2 = [('o', n0+j, k) for n0 in range(0, 10, 2) for k in range(3) for j in range(2)]
    pl = Place(o1 + o2, set(o1[1:28:2]))
    g.prof(0)
    g.w640_setup(20, 25, 's41')
    g(f's_mul_i32 s44, s40, {192*1280}')
    g.wload([f's_add_u32 s33, s44, {E*16*1280}' for E in range(12)], 5, 20, [S2]*12, 's41', 5120, 5, 25,
            lambda E: [(reg(pl.loc[('o', n, E//4)] + 2*(E % 4), 2), n*32) for n in range(10)])
    w192_ops(g, pl, [S1], lambda mi, t, k: ('v', t, k))
    g.prof(1)
    ab_addr(g)
    g(f'''v_and_b32 v1, 15, v0
    v_lshrrev_b32 v2, 4, v0
    s_mul_i32 s30, {sW}, 768
    s_add_u32 s30, s30, {RING}
    v_lshl_add_u32 v10, v1, 4, s30
    v_and_b32 v3, 1, v2
    v_lshl_add_u32 v10, v3, 3, v10
    v_lshrrev_b32 v2, 1, v2
    v_lshl_add_u32 v11, v2, 2, v10
    v_add_u32 v11, 512, v11
    v_lshl_add_u32 v10, v2, 8, v10
    v_lshlrev_b32 v13, 4, v1
    v_lshl_add_u32 v13, v3, 3, v13
    v_lshl_add_u32 v13, v2, 14, v13
    s_mul_i32 s30, {sW}, 10
    s_add_u32 s30, s30, 4
    s_lshl_b32 s30, s30, 14
    s_lshl_b32 s31, s40, 8
    s_add_u32 s30, s30, s31
    v_add_u32 v13, s30, v13
    v_lshlrev_b32 v12, 9, v2
    v_lshl_add_u32 v12, v3, 7, v12
    v_bfe_u32 v1, v0, 3, 1
    v_lshl_add_u32 v12, v1, 8, v12
    v_bfe_u32 v1, v0, 2, 1
    v_lshl_add_u32 v12, v1, 4, v12
    v_bfe_u32 v1, v0, 1, 1
    v_lshl_add_u32 v12, v1, 5, v12
    v_and_b32 v1, 1, v0
    v_lshl_add_u32 v12, v1, 3, v12
    v_add_u32 v12, {RING}, v12''')
    get_home(g, 16, 1); wait_ready(g, 16, 1)
    g('s_barrier\ns_mov_b32 s42, 0')
    A0, AV, A2 = 32, 20, 32
    accO = lambda n: (72 + 4*n) if n < 6 else (120 + 4*(n-6))
    def init():
        for i in range(3):
            for x in pl.stage(i): g(x)
        for i in range(12): g(f'v_mov_b32 v{AV+i}, 0')
        for n in range(10):
            for i in range(4): g(f'v_mov_b32 v{accO(n)+i}, 0')
    g('L_b_step:'); stepbase(g, 's36', 's42')
    g('s_mov_b64 s[38:39], -1'); init()
    g('s_cmp_eq_u32 s42, 0\ns_cbranch_scc1 L_b_go')
    tickwait(g, 19, 9, 's36')
    g('L_b_go:\ns_mov_b32 s44, s36')
    vm = VM(); npre = c.get('npre', 7)
    for k in range(npre):
        g(mem_ld(k, A0)); vm.add(k)
        if k < npre-1: g(pace(g))
    fill = {}; pre = {}
    staged(pl, o1, fill, pre)
    nxt = npre
    for p, o in enumerate(o1):
        _, t, k = o
        if t == 0: g(vm.wait(k))
        for x in pre.get(p, []): g(x)
        g(f'v_smfmac_f32_16x16x64_bf16 v[{AV+4*t}:{AV+4*t+3}], v[{A0+4*k}:{A0+4*k+3}], {pl.reg(o)}, v8')
        for x in fill.get(p, []): g(x)
        if t == 0 and nxt < 10: g(mem_ld(nxt, A0)); vm.add(nxt); nxt += 1
    g('s_nop 4')
    for i in range(4): g(f'v_permlane32_swap_b32 v{AV+i}, v{AV+4+i}')
    g(f'v_permlane32_swap_b32 v{AV+8}, v{AV+10}\nv_permlane32_swap_b32 v{AV+9}, v{AV+11}')
    for i in range(4): g(f'v_add_f32 v{AV+i}, v{AV+i}, v{AV+4+i}')
    g(f'''v_cvt_pk_bf16_f32 v{AV+4}, v{AV}, v{AV+1}
    v_cvt_pk_bf16_f32 v{AV+5}, v{AV+2}, v{AV+3}
    ds_write_b64 v10, v[{AV+4}:{AV+5}]
    v_add_f32 v{AV+8}, v{AV+8}, v{AV+10}
    v_add_f32 v{AV+9}, v{AV+9}, v{AV+11}
    v_cvt_pk_bf16_f32 v{AV+10}, v{AV+8}, v{AV+9}
    ds_write_b32 v11, v{AV+10}
    v_cmp_u_f32 vcc, v{AV+8}, v{AV+9}
    s_and_b64 vcc, vcc, s[38:39]
    s_cbranch_scc1 L_b_slow
    s_waitcnt lgkmcnt(0)
    s_barrier''')
    for k in range(3):
        for u in range(2): g(f'ds_read_b64_tr_b16 v[{A2+4*k+2*u}:{A2+4*k+2*u+1}], v12 offset:{k*1024 + u*64}')
    def post(n0):
        a, b = accO(n0), accO(n0+1)
        return [f'v_permlane32_swap_b32 v{a+i}, v{b+i}' for i in range(4)] + [f'v_add_f32 v{a+i}, v{a+i}, v{b+i}' for i in range(4)] + \
               [f'v_cvt_pk_bf16_f32 v{b}, v{a}, v{a+1}', f'v_cvt_pk_bf16_f32 v{b+1}, v{a+2}, v{a+3}',
                f'buffer_store_dwordx2 v[{b}:{b+1}], v13, {WS}, s44 offen sc1', 's_add_u32 s44, s44, 32768']
    todo = []
    for n0 in range(0, 8, 2):
        for x in post(n0): todo.append((3*n0 + 8, x))
    for p, o in enumerate(o2):
        _, n, k = o
        if p in (0, 2, 4): g(f's_waitcnt lgkmcnt({4 - p})')
        g(f'v_smfmac_f32_16x16x64_bf16 v[{accO(n)}:{accO(n)+3}], v[{A2+4*k}:{A2+4*k+3}], {pl.reg(o)}, v8')
        for _ in range(2):
            if todo and todo[0][0] <= p: g(todo.pop(0)[1])
    for _, x in todo: g(x)
    g('s_nop 3')
    for x in post(8): g(x)
    g('s_add_u32 s42, s42, 1\ns_cmp_lt_u32 s42, 64\ns_cbranch_scc1 L_b_step')
    g.prof(2); log_miss(g, 1); g('s_endpgm')
    g('L_b_slow:'); count_miss(g); g('s_waitcnt vmcnt(0) lgkmcnt(0)')
    sentinel_poll(g, [mem_ld(k, A0) for k in range(10)], [('v', A0+i) for i in range(40)], 'L_b_sp', 1)
    g('s_mov_b64 s[38:39], 0'); init(); g('s_branch L_b_go')

FNS = dict(r=role_r, b=role_b)
import roles3
FNS.update(roles3.FNS)
```

```python
from mk import *
from roles2 import *
NEG = 0xff800000
DPP = 'row_mask:0xf bank_mask:0xf'
def dpp_reduce(g, op, v, steps):
    for st in steps: g(f's_nop 1\n{op}_dpp v{v}, v{v}, v{v} {st} {DPP}')
X1, X2, HM, MI = 'quad_perm:[1,0,3,2]', 'quad_perm:[2,3,0,1]', 'row_half_mirror', 'row_mirror'

def role_a(g):
    c = g.cfg
    g('L_a:'); ab_common(g, 0)
    g.srd(12, P_WQ, SZ_W); g.srd(16, P_WK, SZ_W)
    order = [(t, k) for k in range(3) for t in range(6)] + [(t, k) for k in range(3, 10) for t in range(4)] + [(t, k) for k in range(3, 10) for t in (4, 5)]
    pl = Place(order, set(order[3:56:4]))
    g.prof(0)
    w192_ops(g, pl, [S1, S2], lambda mi, t, k: (2*t + mi, k))
    g.prof(1)
    ab_addr(g)
    g(f'''v_and_b32 v1, 15, v0
    v_lshrrev_b32 v2, 4, v0
    v_lshlrev_b32 v3, 2, v2
    v_sub_u32 v3, v1, v3
    v_mov_b32 v32, 0x3f80
    v_mov_b32 v33, 0x3f800000
    v_mov_b32 v10, 0
    v_mov_b32 v11, 0''')
    for i in range(4):
        g(f'v_cmp_eq_u32 vcc, {i}, v3\ns_nop 1\nv_cndmask_b32 v{10 + i//2}, v{10 + i//2}, v{32 + i % 2}, vcc')
    g(f'''v_mul_u32_u24 v12, 208, v1
    v_lshl_add_u32 v12, v2, 4, v12
    v_add_u32 v12, s32, v12''')
    g(f'''v_lshrrev_b32 v1, 5, v0
    s_lshl_b32 s30, {sW}, 1
    v_add_u32 v1, s30, v1
    v_and_b32 v2, 31, v0
    v_and_b32 v32, 1, v2
    v_bfe_u32 v33, v2, 1, 1
    v_bfe_u32 v34, v2, 2, 1
    v_bfe_u32 v35, v2, 3, 1
    v_lshlrev_b32 v13, 6, v32
    v_lshl_add_u32 v13, v35, 5, v13
    v_lshl_add_u32 v13, v33, 4, v13
    v_lshl_add_u32 v13, v34, 3, v13
    v_lshlrev_b32 v36, 4, v32
    v_lshl_add_u32 v36, v33, 3, v36
    v_add_u32 v36, 160, v36
    v_mov_b32 v37, 192
    v_cmp_gt_u32 vcc, 16, v2
    v_cmp_gt_u32 s[28:29], 20, v2
    s_nop 1
    v_cndmask_b32 v13, v36, v13, vcc
    v_cndmask_b32 v13, v37, v13, s[28:29]
    v_mul_u32_u24 v36, 208, v1
    v_add_u32 v13, v13, v36
    v_add_u32 v13, {RING}, v13
    v_lshrrev_b32 v14, 2, v2
    v_lshlrev_b32 v14, 7, v14
    v_and_b32 v36, 3, v2
    v_lshl_add_u32 v14, v36, 2, v14
    s_lshl_b32 s30, s40, 9
    s_add_u32 s30, s30, {L_P}
    s_lshr_b32 s31, s30, 13
    s_lshl_b32 s31, s31, 13
    s_add_u32 s30, s30, s31
    v_add_u32 v14, s30, v14
    v_lshlrev_b32 v36, 7, v33
    v_lshl_add_u32 v36, v32, 2, v36
    s_lshr_b32 s30, s40, 1
    s_lshl_b32 s30, s30, 8
    s_and_b32 s31, s40, 1
    s_lshl_b32 s31, s31, 3
    s_add_u32 s30, s30, s31
    s_add_u32 s30, s30, {mapL(L_P + 16384)}
    v_add_u32 v36, s30, v36
    v_cndmask_b32 v14, v36, v14, vcc
    v_lshl_add_u32 v14, v1, 4, v14
    v_mov_b32 v37, {OOB}
    v_cndmask_b32 v14, v37, v14, s[28:29]
    v_lshlrev_b32 v15, 7, v0
    v_add_u32 v15, {mapL(L_TW)}, v15
    v_lshrrev_b32 v2, 2, v0
    s_xor_b32 s30, {sW}, {c.get('tWw', 0)}
    s_or_b32 s30, s30, s40
    v_or_b32 v2, s30, v2
    v_cmp_eq_u32 vcc, 0, v2
    s_nop 1
    v_cndmask_b32 v15, v37, v15, vcc''')
    g(f'''v_and_b32 v18, 1, v0
    v_mul_u32_u24 v18, {(F_Q-F_K)*128}, v18
    s_lshl_b32 s30, s40, 7
    s_lshl_b32 s31, {sW}, 3
    s_add_u32 s30, s30, s31
    s_add_u32 s30, s30, {F_K*128}
    v_add_u32 v18, s30, v18''')
    g(f'''v_lshrrev_b32 v1, 3, v0
    s_lshl_b32 s30, {sW}, 3
    v_add_u32 v1, s30, v1
    v_and_b32 v32, 1, v0
    v_bfe_u32 v33, v0, 1, 2
    v_and_b32 v34, 7, v0
    v_mul_u32_u24 v35, 208, v1
    v_add_u32 v35, {RING + 3328}, v35
    v_lshl_add_u32 v20, v32, 6, v35
    v_lshl_add_u32 v20, v33, 4, v20
    v_lshl_add_u32 v21, v34, 2, v35
    v_add_u32 v21, 160, v21
    v_and_b32 v35, 15, v1
    v_lshlrev_b32 v35, 4, v35
    s_lshr_b32 s30, {sW}, 1
    s_mul_i32 s30, s30, 40960
    v_add_u32 v35, s30, v35
    v_lshl_add_u32 v22, v33, 8, v35
    v_lshl_add_u32 v22, v32, 3, v22
    s_lshl_b32 s30, s40, 10
    v_add_u32 v22, s30, v22
    v_lshl_add_u32 v23, v33, 2, v35
    s_lshl_b32 s30, s40, 8
    s_add_u32 s30, s30, 32768
    v_add_u32 v23, s30, v23
    v_cmp_eq_u32 vcc, 0, v32
    s_nop 1
    v_cndmask_b32 v23, v37, v23, vcc
    v_lshlrev_b32 v32, 4, v32
    v_lshl_add_u32 v32, v33, 2, v32''')
    for i in range(4): g(f'v_add_u32 v33, {i}, v32\nv_cmp_le_u32 s[{50+2*i}:{51+2*i}], v33, v1')
    g(f's_add_u32 s30, s40, {F_P}'); g.flagaddr_own(26, None)
    g(f'''v_mov_b32 v25, {sNON}
    v_mov_b32 v27, {NEG}
    s_mov_b32 s58, {f2u(SCALE)}
    s_mul_i32 s45, s40, 12288
    s_mul_i32 s30, {sW}, 3072
    s_add_u32 s45, s45, s30
    s_add_u32 s45, s45, {KX}
    s_add_u32 s46, s45, {QX-KX}
    s_mov_b32 s47, {OOB}
    v_and_b32 v1, 15, v0
    v_mul_u32_u24 v1, 208, v1
    v_add_u32 v1, s32, v1
    v_mov_b32 v32, v27
    v_mov_b32 v33, v27
    ds_write_b64 v1, v[32:33] offset:192''')
    get_home(g, 16, 1); wait_ready(g, 16, 1)
    g.flagwait(16, 18, 1)
    g('s_waitcnt lgkmcnt(0)\ns_barrier\ns_mov_b32 s42, 0')
    g.prof(3)
    A0, AC, KXR, QXR = 32, 72, 120, 132
    def init():
        for i in range(3):
            for x in pl.stage(i): g(x)
        for i in range(24): g(f'v_mov_b32 v{AC+i}, 0')
    tick = f'buffer_store_dword v25, v15, {WS}, s36 offen sc1'
    tW = c.get('tW', 3)
    vm = VM()
    def hook(n):
        if n == tW: g(tick); vm.add('t')
    pst = [f'buffer_store_dwordx2 v[28:29], v22, {WS}, s47 offen sc1', f'buffer_store_dword v30, v23, {WS}, s47 offen sc1']
    g('L_a_step:'); stepbase(g, 's36', 's42')
    g('s_mov_b64 s[38:39], -1'); init()
    g('s_cmp_eq_u32 s42, 0\ns_cbranch_scc1 L_a_go')
    tickwait(g, 19, 9, 's36')
    g('L_a_go:')
    npre = c.get('npre', 7)
    for k in range(npre):
        g(mem_ld(k, A0)); vm.add(k)
        if k < npre-1: g(pace(g))
    fill = {}; pre = {}
    staged(pl, order, fill, pre)
    vq = [(k, mem_ld(k, A0)) for k in range(npre, 10)]
    vq += [(('k', i), f'buffer_load_dwordx4 v[{KXR+4*i}:{KXR+4*i+3}], v4, {WS}, s45 offen offset:{i*1024} sc1') for i in range(3)]
    vq += [(('q', i), f'buffer_load_dwordx4 v[{QXR+4*i}:{QXR+4*i+3}], v4, {WS}, s46 offen offset:{i*1024} sc1') for i in range(3)]
    vq += [(('p', i), pst[i]) for i in range(2)]
    def pairpost(q, k):
        return [f'v_permlane32_swap_b32 v{q+i}, v{k+i}' for i in range(4)] + [f'v_add_f32 v{q+i}, v{q+i}, v{k+i}' for i in range(4)] + \
               [f'v_cvt_pk_bf16_f32 v{k}, v{q}, v{q+1}', f'v_cvt_pk_bf16_f32 v{k+1}, v{q+2}, v{q+3}']
    tr = lambda q, k: f'v_mfma_f32_16x16x16_bf16 v[{q}:{q+3}], v[{k}:{k+1}], v[10:11], 0'
    cv = lambda d, s: [f'v_cvt_pk_bf16_f32 v{d}, v{s}, v{s+1}', f'v_cvt_pk_bf16_f32 v{d+1}, v{s+2}, v{s+3}']
    pp = pairpost(72, 76) + pairpost(80, 84)
    for i, x in enumerate(pp): fill.setdefault(46 + i//2, []).append(x)
    fill.setdefault(52, []).append(tr(72, 76))
    fill.setdefault(56, []).extend(cv(76, 72) + [tr(80, 84)])
    fill.setdefault(57, []).extend(['v_cmp_u_f32 vcc, v72, v72', 's_and_b64 vcc, vcc, s[38:39]'])
    fill.setdefault(58, []).append('s_cbranch_scc1 L_a_slow')
    seen = set()
    for p, o in enumerate(order):
        t, k = o
        if k not in seen: g(vm.wait(k)); seen.add(k)
        for x in pre.get(p, []): g(x)
        g(f'v_smfmac_f32_16x16x64_bf16 v[{AC+4*t}:{AC+4*t+3}], v[{A0+4*k}:{A0+4*k+3}], {pl.reg(o)}, v8')
        for x in fill.get(p, []): g(x)
        if p % 4 == 1 and vq:
            tag, x = vq.pop(0); g(x); vm.add(tag)
        if p >= 40: hook(p - 60)
    assert not vq
    for x in cv(78, 80): g(x)
    g(vm.wait(('k', 2))); hook(0)
    g('s_nop 0')
    S = [72, 80, 84]
    sc1 = [f'v_mfma_f32_16x16x32_bf16 v[{S[0]}:{S[0]+3}], v[{KXR}:{KXR+3}], v[76:79], 0',
           f'v_mfma_f32_16x16x32_bf16 v[{S[1]}:{S[1]+3}], v[{KXR+4}:{KXR+7}], v[76:79], 0',
           f'v_mfma_f32_16x16x32_bf16 v[{S[2]}:{S[2]+3}], v[76:79], v[76:79], 0']
    p2 = pairpost(88, 92)
    g(sc1[0]); g(sc1[1])
    for x in p2[:3]: g(x)
    g(sc1[2])
    for x in p2[3:]: g(x)
    hook(1)
    g('s_nop 1'); g(tr(88, 92)); g('s_nop 7')
    for x in cv(94, 88): g(x)
    hook(2)
    g('s_nop 1')
    g(f'v_mfma_f32_16x16x16_bf16 v[{S[0]}:{S[0]+3}], v[{KXR+8}:{KXR+9}], v[94:95], v[{S[0]}:{S[0]+3}]')
    g(f'v_mfma_f32_16x16x16_bf16 v[{S[1]}:{S[1]+3}], v[{KXR+10}:{KXR+11}], v[94:95], v[{S[1]}:{S[1]+3}]')
    g(f'v_mfma_f32_16x16x16_bf16 v[{S[2]}:{S[2]+3}], v[94:95], v[94:95], v[{S[2]}:{S[2]+3}]')
    g(f's_nop 0\nds_write_b128 v12, v[{S[0]}:{S[0]+3}]\ns_nop 2\nds_write_b128 v12, v[{S[1]}:{S[1]+3}] offset:64\ns_nop 2\nds_write_b128 v12, v[{S[2]}:{S[2]+3}] offset:128')
    hook(3)
    g('s_waitcnt lgkmcnt(0)\ns_barrier')
    for w in range(4): g(f'ds_read_b64 v[{32+2*w}:{33+2*w}], v13 offset:{w*12288}')
    hook(4)
    g('''s_waitcnt lgkmcnt(2)
    v_pk_add_f32 v[32:33], v[32:33], v[34:35]
    s_waitcnt lgkmcnt(0)
    v_pk_add_f32 v[36:37], v[36:37], v[38:39]
    v_pk_add_f32 v[32:33], v[32:33], v[36:37]
    v_max_f32 v34, v32, v33''')
    hook(5)
    dpp_reduce(g, 'v_max_f32', 34, [X1, X2, HM, MI])
    g('''v_mov_b32 v35, v34
    s_nop 1
    v_permlane16_swap_b32 v34, v35
    v_max_f32 v34, v34, v35
    v_sub_f32 v32, v32, v34
    v_sub_f32 v33, v33, v34
    v_mul_f32 v32, s58, v32
    v_mul_f32 v33, s58, v33
    v_exp_f32 v32, v32
    v_exp_f32 v33, v33''')
    hook(6)
    g('s_nop 0\nv_add_f32 v34, v32, v33')
    dpp_reduce(g, 'v_add_f32', 34, [X1, X2, HM, MI])
    g(f'''v_mov_b32 v35, v34
    s_nop 1
    v_permlane16_swap_b32 v34, v35
    v_add_f32 v34, v34, v35
    v_rcp_f32 v34, v34
    s_nop 0
    v_mul_f32 v32, v32, v34
    v_mul_f32 v33, v33, v34
    v_cvt_pk_bf16_f32 v32, v32, v33
    buffer_store_dword v32, v14, {WS}, s36 offen sc1''')
    vm.add('pp'); hook(7)
    g(vm.wait(('p', 1))); g.flagstore(24, 26, 's42'); g.flagload(16, 18)
    T = [(0, 0), (2, 0), (0, 1), (1, 1), (2, 1)]
    for i, (kt, mu) in enumerate(T):
        A = f'v[{KXR+4*kt}:{KXR+4*kt+3}]' if kt < 2 else 'v[76:79]'
        g(f'v_mfma_f32_16x16x32_bf16 v[{40+4*i}:{43+4*i}], {A}, v[{QXR+4*mu}:{QXR+4*mu+3}], 0')
    for i, (kt, mu) in enumerate(T):
        A = f'v[{KXR+8+2*kt}:{KXR+9+2*kt}]' if kt < 2 else 'v[94:95]'
        g(f'v_mfma_f32_16x16x16_bf16 v[{40+4*i}:{43+4*i}], {A}, v[{QXR+8+2*mu}:{QXR+9+2*mu}], v[{40+4*i}:{43+4*i}]')
    for i, (kt, mu) in enumerate(T):
        if i >= 3: g('s_nop 2')
        g(f'ds_write_b128 v12, v[{40+4*i}:{43+4*i}] offset:{3328*(1+mu) + kt*64}')
    g('s_waitcnt lgkmcnt(0)\ns_barrier')
    for w in range(4): g(f'ds_read_b128 v[{40+4*w}:{43+4*w}], v20 offset:{w*12288}\nds_read_b32 v{56+w}, v21 offset:{w*12288}')
    g(f's_mul_i32 s47, s42, 81920\ns_add_u32 s47, s47, {PX}\ns_add_u32 s45, s45, {32*12288}\ns_add_u32 s46, s46, {32*12288}\ns_waitcnt lgkmcnt(0)')
    for a, b in ((40, 44), (42, 46), (48, 52), (50, 54), (40, 48), (42, 50), (56, 58)): g(f'v_pk_add_f32 v[{a}:{a+1}], v[{a}:{a+1}], v[{b}:{b+1}]')
    g('v_add_f32 v44, v56, v57')
    for i in range(4): g(f'v_cndmask_b32 v{40+i}, v27, v{40+i}, s[{50+2*i}:{51+2*i}]')
    g('v_max3_f32 v45, v40, v41, v42\nv_max3_f32 v45, v43, v44, v45')
    dpp_reduce(g, 'v_max_f32', 45, [X1, X2, HM])
    for i in range(5): g(f'v_sub_f32 v{40+i}, v{40+i}, v45')
    for i in range(5): g(f'v_mul_f32 v{40+i}, s58, v{40+i}')
    for i in range(5): g(f'v_exp_f32 v{40+i}, v{40+i}')
    g('v_add_f32 v45, v40, v41\nv_add_f32 v46, v42, v43\nv_add_f32 v45, v45, v44\nv_add_f32 v45, v45, v46')
    dpp_reduce(g, 'v_add_f32', 45, [X1, X2, HM])
    g('v_rcp_f32 v45, v45\ns_nop 0')
    for i in (4, 0, 1, 2, 3): g(f'v_mul_f32 v{40+i}, v{40+i}, v45')
    g(f'''v_mov_b32_dpp v46, v44 {X1} {DPP}
    v_cvt_pk_bf16_f32 v28, v40, v41
    v_cvt_pk_bf16_f32 v29, v42, v43
    v_cvt_pk_bf16_f32 v30, v44, v46
    s_add_u32 s42, s42, 1
    s_cmp_eq_u32 s42, 64
    s_cbranch_scc1 L_a_done
    s_add_u32 s44, s42, 1
    s_waitcnt vmcnt(0)''')
    g.flagwait(16, 18, 's44', cached=True)
    g('s_branch L_a_step\nL_a_done:')
    for x in pst: g(x)
    g('s_waitcnt vmcnt(0)'); g.flagstore(24, 26, 64)
    g.prof(2); log_miss(g, 2); g('s_endpgm')
    g('L_a_slow:'); count_miss(g); g('s_waitcnt vmcnt(0) lgkmcnt(0)')
    sentinel_poll(g, [mem_ld(k, A0) for k in range(10)], [('v', A0+i) for i in range(40)], 'L_a_sp', 1)
    g('s_mov_b64 s[38:39], 0'); init(); g('s_branch L_a_go')

FNS = dict(a=role_a)
import roles4
FNS.update(roles4.FNS)
```

```python
from mk import *
from roles2 import *
LOG2E = f2u(1.4426950408889634); EPS = f2u(1e-6)
KVF = [(0,0),(1,0),(1,1),(2,0),(2,1),(3,1),(3,2),(4,1),(4,2)]

def phi(src, dst, n):
    out = []
    for i in range(n): out.append(f'v_mul_f32 v{dst+i}, s60, v{src+i}')
    for i in range(n): out.append(f'v_exp_f32 v{dst+i}, v{dst+i} clamp')
    for i in range(n): out.append(f'v_max_f32 v{src+i}, 0, v{src+i}')
    for i in range(n): out.append(f'v_add_f32 v{dst+i}, v{dst+i}, v{src+i}')
    for i in range(n): out.append(f'v_add_f32 v{dst+i}, s61, v{dst+i}')
    return out

def role_f(g):
    g(f'''L_f:
    s_and_b32 s30, {sIDX}, 1
    s_mul_i32 s30, s30, 5
    s_mul_i32 s40, {sX}, 10
    s_add_u32 s40, s40, s30
    s_bfe_u32 s42, {sIDX}, 0x10001
    s_xor_b32 s42, s42, 1
    s_mov_b32 s97, 0
    v_lshlrev_b32 v4, 4, v0
    v_add_u32 v5, 4096, v4
    v_and_b32 v1, 7, v0
    s_lshl_b32 s30, {sW}, 3
    v_add_u32 v1, s30, v1
    v_lshlrev_b32 v1, 7, v1
    s_lshl_b32 s30, {sX}, 3
    s_add_u32 s30, s30, {F_U*128}
    v_add_u32 v6, s30, v1
    v_bfe_u32 v2, v0, 3, 2
    v_lshl_add_u32 v7, v2, 3, v1
    v_add_u32 v7, {F_P*128}, v7
    s_lshl_b32 s30, {sX}, 2
    s_add_u32 s30, s30, {sIDX}
    s_add_u32 s30, s30, {F_B - 26}''')
    g.flagaddr_own(8, None)
    g(f'''v_mov_b32 v15, {sNON}
    s_mul_i32 s30, {sW}, 10240
    v_add_u32 v9, s30, v4
    s_lshl_b32 s30, {sW}, 10
    v_add_u32 v10, s30, v4
    v_lshlrev_b32 v11, 3, v0
    s_lshl_b32 s30, {sW}, 9
    v_add_u32 v11, s30, v11
    v_mov_b32 v12, 0
    v_mov_b32 v13, 0''')
    get_home(g, 16, 1)
    PR, AC = 32, 112
    z = lambda t, ks: (t*10 + ks)*4
    def uxload():
        g('s_add_u32 s44, s42, 1'); g.flagwait(12, 6, 's44', cached=True)
        g(f'''s_mul_i32 s45, s42, 40
        s_add_u32 s45, s45, s40
        s_lshl_b32 s45, s45, 15
        s_lshl_b32 s30, {sW}, 13
        s_add_u32 s45, s45, s30
        s_add_u32 s45, s45, {UX}''')
        for t in range(5):
            for h in range(8): g(f'buffer_load_dwordx4 a[{z(t,h)}:{z(t,h)+3}], v{4 + h//4}, {WS}, s45 offen offset:{(h % 4)*1024} sc1')
            if t < 4: g('s_add_u32 s45, s45, 32768')
    uxload()
    g.prof(1)
    g('L_f_seg:'); stepbase(g, 's36', 's42')
    g(f'''s_add_u32 s30, s40, 4
    s_lshl_b32 s30, s30, 14
    s_add_u32 s36, s36, s30
    s_lshl_b32 s30, {sW}, 11
    s_add_u32 s36, s36, s30
    s_mul_i32 s46, s42, 81920
    s_add_u32 s46, s46, {PX}
    s_add_u32 s48, s46, s30
    s_add_u32 s48, s48, 32768
    s_add_u32 s49, s48, 40960
    s_lshl_b32 s30, {sW}, 13
    s_add_u32 s46, s46, s30
    s_add_u32 s47, s46, 40960
    s_mov_b64 s[38:39], -1
    s_add_u32 s44, s42, 1''')
    for t in range(1, 5): g(f's_add_u32 s{51+t}, s36, {t*16384}')
    g('s_mov_b32 s51, s36')
    g.flagwait(16, 7, 's44')
    um = [f'buffer_load_dwordx4 a[{z(t,8+q)}:{z(t,8+q)+3}], v4, {WS}, s{51+t} offen offset:{q*1024} sc1' for q in range(2) for t in range(5)]
    vm = VM()
    pr = lambda m, ks: PR + (ks*2 + m)*4
    for ks in range(10):
        if ks == 8:
            for x in um: g(x); vm.add('u')
        for m in range(2):
            if ks < 8: g(f'buffer_load_dwordx4 v[{pr(m,ks)}:{pr(m,ks)+3}], v{4 + ks//4}, {WS}, s{46+m} offen offset:{(ks % 4)*1024} sc1')
            else: g(f'buffer_load_dwordx4 v[{pr(m,ks)}:{pr(m,ks)+3}], v4, {WS}, s{48+m} offen offset:{(ks-8)*1024} sc1')
            vm.add((m, ks))
    g('L_f_go:')
    for ks in range(10):
        for m in range(2):
            g(vm.wait((m, ks)))
            for t in range(5):
                d = AC + (t*2+m)*4
                g(f'v_mfma_f32_16x16x32_bf16 v[{d}:{d+3}], a[{z(t,ks)}:{z(t,ks)+3}], v[{pr(m,ks)}:{pr(m,ks)+3}], ' + (f'v[{d}:{d+3}]' if ks else '0'))
    g('s_mov_b64 s[28:29], 0')
    for t in range(5):
        d = AC + t*8
        for q in range(2): g(f'v_cmp_u_f32 vcc, v{d+2*q}, v{d+2*q+1}\ns_or_b64 s[28:29], s[28:29], vcc')
    g('s_and_b64 s[28:29], s[28:29], s[38:39]\ns_cbranch_scc1 L_f_slow')
    for i in range(10): g(f'ds_write_b128 v9, v[{AC+4*i}:{AC+4*i+3}] offset:{i*1024}')
    g(f'''s_mul_i32 s50, s42, 40
    s_add_u32 s50, s50, s40
    s_lshl_b32 s50, s50, 10
    s_add_u32 s50, s50, {BOUT}
    s_waitcnt lgkmcnt(0)
    s_barrier''')
    for j in range(3):
        for w in range(4): g(f'ds_read_b128 v[{PR+16*j+4*w}:{PR+16*j+4*w+3}], v10 offset:{w*10240 + j*4096}')
    g(f's_cmp_lt_u32 {sW}, 2\ns_cselect_b32 s59, s50, {OOB}\ns_add_u32 s59, s59, 4096')
    for j in range(3):
        b = PR + 16*j
        g(f's_waitcnt lgkmcnt({8 - 4*j})')
        for a, bb in ((0, 4), (2, 6), (8, 12), (10, 14), (0, 8), (2, 10)): g(f'v_pk_add_f32 v[{b+a}:{b+a+1}], v[{b+a}:{b+a+1}], v[{b+bb}:{b+bb+1}]')
        g(f'v_cvt_pk_bf16_f32 v{b}, v{b}, v{b+1}\nv_cvt_pk_bf16_f32 v{b+1}, v{b+2}, v{b+3}')
        g(f'buffer_store_dwordx2 v[{b}:{b+1}], v11, {WS}, ' + (f's50 offen offset:{j*2048} sc1' if j < 2 else 's59 offen sc1'))
    g(f'''s_barrier
    s_add_u32 s42, s42, 2
    s_waitcnt vmcnt(0)''')
    g.flagstore(14, 8, 's44')
    g('s_cmp_ge_u32 s42, 64\ns_cbranch_scc1 L_f_done')
    uxload()
    g('s_branch L_f_seg\nL_f_done:'); g.prof(2); log_miss(g, 1); g('s_endpgm')
    g('L_f_slow:'); count_miss(g)
    sentinel_poll(g, um, [('a', z(t, 8) + i) for t in range(5) for i in range(8)], 'L_f_sp', 1)
    g('s_mov_b64 s[38:39], 0\ns_branch L_f_go')

def role_a1(g):
    g(f'''L_a1:
    s_lshl_b32 s40, {sX}, 1
    s_add_u32 s40, s40, {sIDX}
    s_sub_u32 s40, s40, 30
    s_mov_b32 s60, {LOG2E}
    s_mov_b32 s61, {EPS}''')
    g.srd(12, P_WQKV, SZ_WQKV)
    proj_prime(g, 0)
    g.prof(0)
    g(f's_mul_i32 s32, {sW}, 15360\ns_add_u32 s32, s32, 81920\ns_mul_i32 s43, s40, 160\ns_add_u32 s43, s43, 1280')
    g.w192_setup(4, 7, 's32', rowstride=3840, colbytes_w=40)
    for i in range(3):
        g(f'v_add_u32 v1, {64*i}, v0'); g.divmod(2, 3, 1, 6, 192)
        g(f'v_add_u32 v1, {1280-48}, v{4+i}\nv_cmp_lt_u32 vcc, 2, v3\ns_nop 1\nv_cndmask_b32 v{4+i}, v{4+i}, v1, vcc')
    g('v_add_u32 v9, 40, v7\nv_add_u32 v1, 32, v7\nv_and_b32 v2, 3, v0\nv_cmp_eq_u32 vcc, 0, v2\ns_nop 1\nv_cndmask_b32 v9, v9, v1, vcc')
    reads = lambda kk: [(f'a[{(kk*3+t)*4+2*u}:{(kk*3+t)*4+2*u+1}]', (0, 0, 72)[t] + u*384, (7, 9, 7)[t]) for t in range(3) for u in range(2)]
    g.wload([f's_add_u32 s33, s43, {kk*32*3840}' for kk in range(20)], 3, 4, [S1]*20, 's32', 3072, 5, 7, reads)
    g.prof(1)
    KV, TM, FA, FB, ONE = 128, 152, 168, 176, 184
    for i in range(24): g(f'v_mov_b32 v{KV+i}, 0')
    for i in range(4): g(f'v_mov_b32 v{ONE+i}, 0x3f803f80')
    g('s_mov_b32 s46, 0')
    proj_start(g)
    def epi(b):
        v = []
        for tb in range(2):
            for q in range(4): v.append(f'v_cvt_pk_bf16_f32 v{FB+4*tb+q}, v{b+(tb+1)*8+2*q}, v{b+(tb+1)*8+2*q+1}')
        v += phi(b, TM, 16)
        for q in range(8): v.append(f'v_cvt_pk_bf16_f32 v{FA+q}, v{TM+2*q}, v{TM+2*q+1}')
        m = []
        for ta in range(2):
            for tb in range(3):
                d = KV + (ta*3+tb)*4; B = FB + 4*tb if tb < 2 else ONE
                m.append(f'v_mfma_f32_16x16x32_bf16 v[{d}:{d+3}], v[{FA+4*ta}:{FA+4*ta+3}], v[{B}:{B+3}], v[{d}:{d+3}]')
        return v, m
    proj_segment(g, 0, True, {}, 0)
    g('s_branch L_a1_odd\nL_a1_loop:')
    for par in range(2):
        if par == 1: g('L_a1_odd:')
        v, m = epi(ACC[1-par]); fill = {}
        p = 3
        for x in v:
            while len(fill.get(p, [])) >= (1 if (p % 3 == 0 or p % 6 == 5 or (p < 24 and p % 4 in (1, 2)) or 'exp' in x) else 2): p += 1
            fill.setdefault(p, []).append(x)
        assert p < 90, p
        for i, x in enumerate(m): fill.setdefault(p + 2 + i, []).append(x)
        fill.setdefault(110, []).append('s_add_u32 s46, s46, 1')
        proj_segment(g, par, True, fill, 0)
    g('s_cmp_lt_u32 s46, 63\ns_cbranch_scc1 L_a1_loop\ns_nop 5')
    v, m = epi(ACC[1])
    for x in v: g(x)
    g('s_nop 1')
    for x in m: g(x)
    g.prof(2)
    g('s_waitcnt vmcnt(0) lgkmcnt(0)\ns_barrier')
    for i in range(4): g(f'v_mov_b32 v{32+i}, 0')
    g(f'v_lshlrev_b32 v10, 4, v0\ns_mul_i32 s30, {sW}, 9216\nv_add_u32 v1, s30, v10')
    for i in range(9): g(f'ds_write_b128 v1, v[32:35] offset:{i*1024}')
    g(f'''s_waitcnt lgkmcnt(0)
    s_barrier
    v_and_b32 v1, 15, v0
    v_lshrrev_b32 v2, 4, v0
    s_mul_i32 s30, {sW}, {20*208 + 40}
    v_mul_u32_u24 v3, 208, v1
    v_lshl_add_u32 v3, v2, 3, v3
    v_add_u32 v3, s30, v3
    v_mov_b32 v36, 40960
    v_cmp_le_u32 s[50:51], 4, v1
    v_cmp_gt_u32 s[52:53], 8, v1
    v_cmp_eq_u32 s[54:55], 0, v2
    v_subrev_u32 v32, {4*208}, v3
    v_add_u32 v33, {12*208}, v3
    v_cndmask_b32 v32, v36, v32, s[50:51]
    v_cndmask_b32 v33, v36, v33, s[52:53]
    v_cndmask_b32 v34, v36, v32, s[54:55]
    v_cndmask_b32 v35, v36, v33, s[54:55]''')
    for i in range(12): g(f'v_cvt_pk_bf16_f32 v{TM+i}, v{KV+2*i}, v{KV+2*i+1}')
    for ta in range(2):
        for tb in range(2):
            g(f'ds_write_b64 v{32+2*ta+tb}, v[{TM+(ta*3+tb)*2}:{TM+(ta*3+tb)*2+1}] offset:{32*ta}')
            g(f'ds_write_b64 v{32+2*ta+tb}, v[{TM+(ta*3+2)*2}:{TM+(ta*3+2)*2+1}] offset:{32*ta + 80*208}')
    g(f'''v_mul_u32_u24 v3, 208, v1
    v_lshl_add_u32 v3, v2, 3, v3
    s_lshr_b32 s30, {sW}, 1
    s_mul_i32 s31, s30, {80*208}
    v_add_u32 v3, s31, v3
    s_lshl_b32 s31, s40, 1
    s_add_u32 s30, s30, s31
    s_mul_i32 s45, s30, 9216
    s_add_u32 s45, s45, {KVP}
    s_waitcnt lgkmcnt(0)
    s_barrier''')
    for f, (et, ks) in enumerate(KVF):
        for u in range(2): g(f'ds_read_b64 v[{40+4*f+2*u}:{41+4*f+2*u}], v3 offset:{et*16*208 + ks*64 + u*32}')
    g('s_waitcnt lgkmcnt(0)')
    for f in range(9):
        g(f'buffer_store_dwordx4 v[{40+4*f}:{43+4*f}], v10, {WS}, s45 offen offset:{(f % 4)*1024} sc1')
        if f % 4 == 3: g('s_add_u32 s45, s45, 4096')
    g('s_barrier')
    g(f'''s_lshr_b32 s41, s40, 2
    s_and_b32 s42, s40, 3
    s_cmp_eq_u32 s41, 0
    s_cselect_b32 s12, s{P_WQKV}, s{P_WOA}
    s_cselect_b32 s13, s{P_WQKV+1}, s{P_WOA+1}
    s_mov_b32 s14, {SZ_WOA}
    s_cselect_b32 s14, {SZ_WQKV}, s14
    s_mov_b32 s15, 0x20000
    s_movk_i32 s44, 1280
    s_cselect_b32 s44, 3840, s44
    s_cselect_b32 s46, 3, 2
    s_movk_i32 s47, {16*320}
    s_cselect_b32 s47, {4*320}, s47
    s_mul_i32 s32, {sW}, 40960
    s_mul_i32 s43, s42, 160
    s_mul_i32 s43, s43, s44
    s_lshl_b32 s48, s44, 5''')
    for i in range(10):
        g(f'v_add_u32 v1, {64*i}, v0'); g.divmod(2, 3, 1, 20, 640)
        g(f'v_mul_lo_u32 v2, s44, v2\nv_lshl_add_u32 v2, v3, 4, v2\ns_mul_i32 s30, {sW}, 320\nv_add_u32 v{20+i}, s30, v2')
    g(f'''v_lshrrev_b32 v1, 4, v0
    v_lshlrev_b32 v1, s46, v1
    v_bfe_u32 v2, v0, 2, 2
    v_add_u32 v1, v1, v2
    v_mul_u32_u24 v1, 320, v1
    v_and_b32 v2, 3, v0
    v_lshl_add_u32 v1, v2, 3, v1
    v_add_u32 v30, s32, v1
    v_add_u32 v31, s47, v30
    s_lshl_b32 s45, s41, 2
    s_add_u32 s45, s45, {sW}
    s_mul_i32 s45, s45, 20
    s_mul_i32 s30, s42, 5
    s_add_u32 s45, s45, s30
    s_mul_i32 s45, s45, 10240
    s_add_u32 s45, s45, {WT}''')
    def post(u):
        for t in range(10):
            g(f'buffer_store_dwordx4 v[{40+4*t}:{43+4*t}], v10, {WS}, s45 offen offset:{(t % 4)*1024} sc1')
            if t % 4 == 3 or t == 9: g(f's_add_u32 s45, s45, {4096 if t < 9 else 2048}')
    g.wload(['s_mov_b32 s33, s43\ns_add_u32 s43, s43, s48']*5, 10, 20, [S1]*5, 's32', 10240, 4, 30,
            lambda u: [(f'v[{40+4*t+2*q}:{41+4*t+2*q}]', t*32, 30+q) for t in range(10) for q in range(2)], post, drain=True)
    g(f's_add_u32 s30, s40, {F_A1}'); g.flagaddr_own(12, None)
    g(f'v_mov_b32 v15, {sNON}\ns_waitcnt vmcnt(0)'); g.flagstore(14, 12, 1)
    g.prof(3)
    g('s_endpgm')

def role_a3(g):
    g(f'''L_a3:
    s_lshl_b32 s42, s41, 5
    s_add_u32 s42, s42, s40
    s_mov_b32 s60, {LOG2E}
    s_mov_b32 s61, {EPS}
    s_barrier
    s_mul_i32 s44, s42, 40960''')
    g.srd(12, P_GATE, 1280); g.srd(16, P_OUT, SZ_X)
    for p in g.x_dma(8, 's34', 's44'): g(p[0]); g('s_nop 0'); g(p[1])
    g(f'''v_lshlrev_b32 v4, 4, v0
    v_add_u32 v5, 4096, v4
    v_add_u32 v6, 8192, v4
    v_lshrrev_b32 v7, 4, v0
    v_lshlrev_b32 v7, 4, v7
    v_and_b32 v1, 7, v0
    v_bfe_u32 v2, v0, 3, 2
    v_lshlrev_b32 v1, 7, v1
    v_lshl_add_u32 v9, v2, 3, v1
    v_add_u32 v9, {F_A1*128}, v9
    s_mul_i32 s45, {sW}, 204800
    s_add_u32 s45, s45, {WT}''')
    g.flagwait(12, 9, 1)
    g('s_barrier')
    g.prof(4)
    AC, GA, XB, D = 32, 112, 120, 5
    wr = lambda kk, t: ((kk % D)*11 + t)*4
    vm = VM()
    def wld(ph, kk):
        out = [((ph, kk, t), f'buffer_load_dwordx4 a[{wr(kk,t)}:{wr(kk,t)+3}], v{4 + t//4}, {WS}, s45 offen offset:{(t % 4)*1024} sc1') for t in range(10)]
        if ph == 0: out.append(((ph, kk, 10), f'buffer_load_dwordx4 a[{wr(kk,10)}:{wr(kk,10)+3}], v7, {S1}, 0 offen offset:{kk*64}'))
        out.append((None, f's_add_u32 s45, s45, {10240 if (ph, kk) != (0, 19) else 10240 + 3*204800}'))
        return out
    def put(it):
        g(it[1])
        if it[0] is not None: vm.add(it[0])
    for kk in range(D-1):
        for it in wld(0, kk): put(it)
    def gemm(ph, bread):
        nt = 11 if ph == 0 else 10
        for m in range(2): g(bread(0, m))
        for kk in range(20):
            nk = kk + D - 1
            q = wld(ph, nk) if nk < 20 else (wld(1, nk - 20) if ph == 0 else [])
            if kk < 19:
                for m in range(2): g(bread(kk+1, m))
            g(vm.wait((ph, kk, nt-1))); g(f's_waitcnt lgkmcnt({2 if kk < 19 else 0})')
            for t in range(nt):
                for m in range(2):
                    d = AC + (t*2+m)*4; x = XB + 8*(kk % 2) + 4*m
                    g(f'v_mfma_f32_16x16x32_bf16 v[{d}:{d+3}], a[{wr(kk,t)}:{wr(kk,t)+3}], v[{x}:{x+3}], ' + (f'v[{d}:{d+3}]' if kk else '0'))
                if q: put(q.pop(0))
            for it in q: put(it)
    gemm(0, lambda kk, m: xread(XB + 8*(kk % 2) + 4*m, 16, kk, m))
    KF, PQ, TM, NU = 136, 208, 232, 120
    g(f'''s_mul_i32 s46, {sW}, {2*18432}
    s_add_u32 s46, s46, {KVP}
    s_mul_i32 s30, {sW}, 10240
    s_add_u32 s30, s30, 40960
    v_add_u32 v10, s30, v4
    v_add_u32 v11, 40960, v4''')
    for i in range(2): g(f'v_mov_b32 v{PQ+18+4*i}, 0\nv_mov_b32 v{PQ+19+4*i}, 0')
    pq = lambda ks, m: PQ + (ks*2+m)*4
    for G in range(2):
        for f in range(18):
            g(f'buffer_load_dwordx4 v[{KF+4*f}:{KF+4*f+3}], v4, {WS}, s46 offen offset:{(f % 4)*1024} sc1'); vm.add(('kf', G, f))
            if f % 4 == 3 or f == 17: g(f's_add_u32 s46, s46, {4096 if f < 17 else 2048}')
        for t in range(5):
            b = AC + (G*5+t)*8
            for x in phi(b, TM, 8): g(x)
            for m in range(2):
                r = pq(t//2, m) + 2*(t % 2)
                g(f'v_cvt_pk_bf16_f32 v{r}, v{TM+4*m}, v{TM+4*m+1}\nv_cvt_pk_bf16_f32 v{r+1}, v{TM+4*m+2}, v{TM+4*m+3}')
        g('s_waitcnt vmcnt(0)')
        for et in range(5):
            fs = [f for f, (e, ks) in enumerate(KVF) if e == et]
            for n, f in enumerate(fs):
                for wh in range(2):
                    for m in range(2):
                        d = NU + (wh*2+m)*4; a = KF + (wh*9+f)*4; b = pq(KVF[f][1], m)
                        g(f'v_mfma_f32_16x16x32_bf16 v[{d}:{d+3}], v[{a}:{a+3}], v[{b}:{b+3}], ' + (f'v[{d}:{d+3}]' if n else '0'))
            g('s_nop 7')
            for i in range(8): g(f'v_add_f32 v{TM+i}, s61, v{NU+8+i}')
            for i in range(8): g(f'v_rcp_f32 v{TM+i}, v{TM+i}')
            for i in range(8): g(f'v_mul_f32 v{TM+i}, v{NU+i}, v{TM+i}')
            E = G*5 + et
            for m in range(2):
                r = TM + 8 + 2*m
                g(f'v_cvt_pk_bf16_f32 v{r}, v{TM+4*m}, v{TM+4*m+1}\nv_cvt_pk_bf16_f32 v{r+1}, v{TM+4*m+2}, v{TM+4*m+3}')
                g(f'ds_write_b64 v10, v[{r}:{r+1}] offset:{((E//2)*2 + m)*1024 + (E % 2)*8}')
    for m in range(2):
        g(f'''v_mul_f32 v{20+m}, s60, v{GA+4*m}
        v_exp_f32 v{20+m}, -v{20+m}
        s_nop 0
        v_add_f32 v{20+m}, 1.0, v{20+m}
        v_rcp_f32 v{20+m}, v{20+m}
        s_nop 0
        v_sub_f32 v{22+m}, 1.0, v{20+m}''')
    g('s_waitcnt lgkmcnt(0)\ns_barrier')
    g.prof(5)
    gemm(1, lambda kk, m: f'ds_read_b128 v[{XB + 8*(kk % 2) + 4*m}:{XB + 8*(kk % 2) + 4*m + 3}], v11 offset:{(kk*2+m)*1024}')
    g.prof(6)
    g(f'''s_and_b32 s30, s42, 1
    s_lshl_b32 s30, s30, 1
    s_lshl_b32 s31, {sW}, 2
    s_add_u32 s30, s30, s31
    s_add_u32 s30, s30, {F_B}
    s_lshl_b32 s30, s30, 7
    v_bfe_u32 v1, v0, 2, 1
    v_and_b32 v2, 3, v0
    v_lshlrev_b32 v1, 7, v1
    v_lshl_add_u32 v9, v2, 3, v1
    v_add_u32 v9, s30, v9
    s_add_u32 s44, s42, 1
    s_mul_i32 s46, s42, 40960
    s_mul_i32 s30, {sW}, 10240
    s_add_u32 s47, s46, s30
    s_add_u32 s47, s47, {BOUT}
    v_lshlrev_b32 v4, 3, v0
    v_add_u32 v5, 4096, v4
    v_add_u32 v6, 8192, v4
    v_and_b32 v1, 15, v0
    v_mul_u32_u24 v7, 1280, v1
    v_lshrrev_b32 v2, 4, v0
    v_lshrrev_b32 v3, 1, v2
    v_and_b32 v2, 1, v2
    v_lshl_add_u32 v7, v2, 5, v7
    v_lshl_add_u32 v7, v3, 4, v7
    s_mul_i32 s30, {sW}, 320
    v_add_u32 v7, s30, v7
    v_add_u32 v8, {16*1280}, v7''')
    for i in range(80): g(f'v_mul_f32 v{AC+i}, v{20 + (i//4) % 2}, v{AC+i}')
    g.flagwait(12, 9, 's44')
    BB = 136
    for i in range(20): g(f'buffer_load_dwordx2 v[{BB+2*i}:{BB+2*i+1}], v{4 + i//8}, {WS}, s47 offen offset:{(i % 8)*512} sc1')
    nst = 0
    for tp in range(5):
        g(f's_waitcnt vmcnt({16 - 4*tp + nst})')
        for m in range(2):
            o = 176 + (tp*2+m)*4
            for u in range(2):
                i = (tp*2+u)*2 + m; d = AC + 4*i; b = BB + 2*i
                g(f'''v_lshlrev_b32 v24, 16, v{b}
                v_and_b32 v25, 0xffff0000, v{b}
                v_lshlrev_b32 v26, 16, v{b+1}
                v_and_b32 v27, 0xffff0000, v{b+1}''')
                for q in range(4): g(f'v_fmac_f32 v{d+q}, v{22+m}, v{24+q}')
                g(f'v_cvt_pk_bf16_f32 v{o+2*u}, v{d}, v{d+1}\nv_cvt_pk_bf16_f32 v{o+2*u+1}, v{d+2}, v{d+3}')
            g(f's_nop 1\nv_permlane16_swap_b32 v{o}, v{o+2}\nv_permlane16_swap_b32 v{o+1}, v{o+3}')
            g(f'buffer_store_dwordx4 v[{o}:{o+3}], v{7+m}, {S2}, s46 offen offset:{tp*64}'); nst += 1
    g.prof(7)
    g('s_endpgm')

FNS = dict(f=role_f, a1=role_a1, a3=role_a3)
```

```python
import sys
sys.path.insert(0, 'gen')
from asmlib import *
NAME = 'gated_mix__linear_attn_block__memory_aug_recurrent_mem_tr__prompt'
FLG, KVP, WT, BOUT, PX, KX, VX, QX, UX, MB = 0, 0x100000, 0x200000, 0x400000, 0x700000, 0xD00000, 0x2500000, 0x3D00000, 0x5500000, 0xA800000
F_K, F_V, F_Q, F_U, F_P, F_B, F_RDY, F_HOME, F_A1, F_T = 0, 32, 64, 96, 128, 160, 192, 240, 256, 320
L_MEM, L_TW, L_TX, L_P, L_UM = 0, 10240, 11264, 12288, 32768
OOB = 0x7f000000
def mapL(L): return ((L >> 13) << 14) | (L & 0x1fff)
sW, sNON, sX, sIDX, sSPIN = 's3', 's4', 's5', 's6', 's7'
WS, S1, S2, SX, S3 = 's[8:11]', 's[12:15]', 's[16:19]', 's[20:23]', 's[24:27]'
P_X, P_WQKV, P_WOA, P_MEM0, P_WQ, P_WK, P_WV, P_WO, P_GATE, P_OUT, P_DBG, P_WS = 64, 66, 68, 72, 74, 76, 78, 80, 84, 86, 88, 90
SZ_X, SZ_W, SZ_WQKV, SZ_WOA = 2048*1280, 640*12288, 640*3840, 640*1280

class G(Asm):
    def __init__(s, cfg):
        super().__init__(); s.cfg = cfg
    def srd(s, d, p, size):
        s(f's_mov_b32 s{d}, s{p}\ns_mov_b32 s{d+1}, s{p+1}\ns_mov_b32 s{d+2}, {size}\ns_mov_b32 s{d+3}, 0x20000')
    def spin(s):
        s(f's_add_u32 {sSPIN}, {sSPIN}, 1\ns_bitcmp1_b32 {sSPIN}, 22\ns_cbranch_scc1 L_abort')
    def flagtest(s, fr, need, lab_fail=None, lab_ok=None):
        s(f'v_cmp_ne_u32 vcc, {sNON}, v{fr+1}\nv_cmp_gt_u32 s[28:29], {need}, v{fr}\ns_or_b64 vcc, vcc, s[28:29]')
        if lab_fail: s(f's_cbranch_scc1 {lab_fail}')
        else: s(f's_cbranch_scc0 {lab_ok}')
    def flagload(s, fr, va):
        s(f'buffer_load_dwordx2 v[{fr}:{fr+1}], v{va}, {WS}, 0 offen sc1')
    def flagwait(s, fr, va, need, cached=False):
        L = s.newlabel('L_fw'); E = s.newlabel('L_fe')
        if cached: s.flagtest(fr, need, lab_ok=E)
        s(f'{L}:'); s.flagload(fr, va); s.spin(); s('s_waitcnt vmcnt(0)')
        s.flagtest(fr, need, lab_fail=L)
        s(f'{E}:')
    def flagaddr_own(s, vd, line_sgpr_expr):
        s(f'''s_lshl_b32 s30, s30, 7
        s_lshl_b32 s31, {sW}, 3
        s_add_u32 s30, s30, s31
        v_mov_b32 v{vd}, s30
        v_mov_b32 v1, {OOB}
        v_cmp_eq_u32 vcc, 0, v0
        s_nop 1
        v_cndmask_b32 v{vd}, v1, v{vd}, vcc''')
    def flagstore(s, fr, va, cnt):
        s(f'v_mov_b32 v{fr}, {cnt}\nbuffer_store_dwordx2 v[{fr}:{fr+1}], v{va}, {WS}, 0 offen sc1')
    def prof(s, slot):
        if not s.cfg.get('prof'): return
        s(f'''s_memrealtime s[94:95]
        s_memtime s[98:99]
        s_lshl_b32 s96, {sX}, 5
        s_add_u32 s96, s96, {sIDX}
        s_lshl_b32 s96, s96, 2
        s_add_u32 s96, s96, {sW}
        s_lshl_b32 s96, s96, 6
        s_add_u32 s96, s96, {0x10000 + slot*4}
        s_waitcnt lgkmcnt(0)
        s_sub_u32 s94, s94, {sNON}
        v_mov_b32 v2, s96
        v_mov_b32 v3, s94
        buffer_store_dword v3, v2, {WS}, 0 offen
        v_mov_b32 v3, s98
        buffer_store_dword v3, v2, {WS}, 0 offen offset:32
        s_waitcnt vmcnt(0)''')
    def divmod(s, q, r, src, d, maxv):
        sh = 16; mg = ((1 << sh) + d - 1) // d
        assert all(((i * mg) >> sh) == i // d for i in range(maxv)), (d, maxv)
        s(f'v_mul_u32_u24 v{q}, {mg}, v{src}\nv_lshrrev_b32 v{q}, {sh}, v{q}\nv_mul_u32_u24 v{r}, {d}, v{q}\nv_sub_u32 v{r}, v{src}, v{r}')

    def wload(s, units, ninstr, voff, srd, ring_base_sgpr, slot_bytes, nslots, vtr, reads, post=None, drain=False):
        n = len(units); depth = nslots
        def issue(u):
            s(units[u])
            for i in range(ninstr):
                s(f's_add_u32 m0, {ring_base_sgpr}, {(u % nslots) * slot_bytes + i * 1024}\ns_nop 0')
                s(f'buffer_load_dwordx4 v{voff+i}, {srd[u]}, s33 offen{s.cfg.get("wnt", "")} lds')
        for u in range(min(depth, n)): issue(u)
        for u in range(n):
            inflight = min(n, u + depth) - u - 1
            s(f's_waitcnt vmcnt({0 if drain else inflight * ninstr})')
            for rd in reads(u):
                s(f'ds_read_b64_tr_b16 {rd[0]}, v{rd[2] if len(rd) > 2 else vtr} offset:{(u % nslots) * slot_bytes + rd[1]}')
            s('s_waitcnt lgkmcnt(0)')
            if post: post(u)
            if u + depth < n: issue(u + depth)
    def w192_setup(s, voff, vtr, ring, rowstride=12288, colbytes_w=96):
        for i in range(3):
            s(f'v_add_u32 v1, {64*i}, v0'); s.divmod(2, 3, 1, 6, 192)
            s(f'v_mul_u32_u24 v2, {rowstride}, v2\nv_lshl_add_u32 v2, v3, 4, v2\ns_mul_i32 s30, {sW}, {colbytes_w}\nv_add_u32 v{voff+i}, s30, v2')
        s(f'''v_lshrrev_b32 v1, 4, v0
        v_lshlrev_b32 v1, 3, v1
        v_bfe_u32 v2, v0, 2, 2
        v_add_u32 v1, v1, v2
        v_mul_u32_u24 v1, 96, v1
        v_and_b32 v2, 3, v0
        v_lshl_add_u32 v1, v2, 3, v1
        v_add_u32 v{vtr}, {ring}, v1''')
    def w640_setup(s, voff, vtr, ring):
        for i in range(5):
            s(f'v_add_u32 v1, {64*i}, v0'); s.divmod(2, 3, 1, 20, 320)
            s(f'v_mul_u32_u24 v2, 1280, v2\nv_lshl_add_u32 v2, v3, 4, v2\ns_mul_i32 s30, {sW}, 320\nv_add_u32 v{voff+i}, s30, v2')
        s(f'''v_lshrrev_b32 v1, 2, v0
        v_mul_u32_u24 v1, 320, v1
        v_and_b32 v2, 3, v0
        v_lshl_add_u32 v1, v2, 3, v1
        v_add_u32 v{vtr}, {ring}, v1''')

    def x_setup(s, vx0, vrd):
        s(f'''v_lshrrev_b32 v1, 3, v0
        s_lshl_b32 s30, {sW}, 3
        v_add_u32 v1, s30, v1
        v_bfe_u32 v2, v1, 1, 3
        v_and_b32 v3, 7, v0
        v_xor_b32 v2, v2, v3
        v_mul_u32_u24 v1, 1280, v1
        v_lshl_add_u32 v{vx0}, v2, 4, v1
        v_and_b32 v1, 15, v0
        v_lshrrev_b32 v2, 1, v1
        v_lshrrev_b32 v3, 4, v0
        v_xor_b32 v2, v2, v3
        v_lshlrev_b32 v1, 7, v1
        v_lshl_add_u32 v{vrd}, v2, 4, v1
        v_xor_b32 v{vrd+1}, 64, v{vrd}
        s_lshl_b32 s34, {sW}, 10''')
    def x_dma(s, vx0, sbuf, soff):
        return [[f's_add_u32 m0, {sbuf}, {i*4096 - i*128}', f'buffer_load_dwordx4 v{vx0}, {SX}, {soff} offen offset:{i*128} lds'] for i in range(10)]

def emit_stream(g, mf, fill):
    for i, m in enumerate(mf):
        if isinstance(m, (list, tuple)):
            for x in m: g(x)
        else: g(m)
        for x in fill.get(i, []): g(x)

def xread(dst, vb, kk, m):
    return f'ds_read_b128 v[{dst}:{dst+3}], v{vb + kk % 2} offset:{((kk//2)*4 + 2*m)*1024}'

XF, ACC = 96, (32, 56)
def proj_prime(g, soff0):
    g.x_setup(8, 16)
    g(f's_mov_b32 s44, {soff0}\ns_mov_b32 s48, s34')
    for b in range(2):
        for p in g.x_dma(8, 's48', 's44'): g(p[0]); g('s_nop 0'); g(p[1])
        if b == 0: g('s_add_u32 s44, s44, 40960\ns_add_u32 s48, s48, 40960')
def proj_start(g):
    g('s_waitcnt vmcnt(0)\ns_barrier\nv_mov_b32 v18, v16\nv_mov_b32 v19, v17\ns_mov_b32 s49, 40960')
    for kk in range(2):
        for m in range(2): g(xread(XF + 8*kk + 4*m, 18, kk, m))
def proj_segment(g, par, swapped, fill, nyoung, after_bar=()):
    acc = lambda t, m: ACC[par] + (t*2 + m)*4
    xf = lambda kk, m: XF + 8*(kk % 4) + 4*m
    cur, nxt = 18 + 2*par, 20 - 2*par
    mf = []
    fill = {k: list(v) for k, v in fill.items()}
    dma = g.x_dma(8, 's48', 's44')
    if not g.cfg.get('nodma'):
        for i in range(10):
            p = (105 + 4*i) % 120
            fill.setdefault(p, []).append(dma[i][0]); fill.setdefault(p + 1, []).append(dma[i][1])
    fill.setdefault(98, []).extend([f'v_add_u32 v{nxt}, s49, v16', f'v_add_u32 v{nxt+1}, s49, v17'])
    fill.setdefault(99, []).extend(['s_add_u32 s49, s49, 40960', 's_cmp_eq_u32 s49, 122880'])
    fill.setdefault(100, []).extend(['s_cselect_b32 s49, 0, s49'])
    fill.setdefault(101, []).extend(['s_add_u32 s48, s49, s34', 's_add_u32 s44, s44, 40960'])
    fill.setdefault(104, []).extend([f's_waitcnt vmcnt({nyoung})', 's_barrier'] + list(after_bar))
    for kk in range(20):
        for j in range(6):
            m, t = j // 3, j % 3
            a = f'a[{(kk*3+t)*4}:{(kk*3+t)*4+3}]'; x = f'v[{xf(kk,m)}:{xf(kk,m)+3}]'
            d = f'v[{acc(t,m)}:{acc(t,m)+3}]'
            A, B = (x, a) if swapped else (a, x)
            ins = f'v_mfma_f32_16x16x32_bf16 {d}, {A}, {B}, {d if kk else 0}'
            pre = ['s_waitcnt lgkmcnt(2)'] if j == 0 else []
            mf.append(pre + [ins])
            if j in (0, 3): fill.setdefault(kk*6 + j, []).insert(0, xread(xf(kk+2, j//3), cur if kk < 18 else nxt, (kk+2) % 20, j//3))
    emit_stream(g, mf, fill)

def pack_frags(ACCb, PK):
    acc = lambda t, m: ACCb + (t*2 + m)*4
    out = []
    for q, (t, m) in enumerate([(0,0),(1,0),(0,1),(1,1),(2,0),(2,1)]):
        out.append(f'v_cvt_pk_bf16_f32 v{PK+2*q}, v{acc(t,m)}, v{acc(t,m)+1}')
        out.append(f'v_cvt_pk_bf16_f32 v{PK+2*q+1}, v{acc(t,m)+2}, v{acc(t,m)+3}')
    return out

def load_proj_weights(g, srd, soff0):
    g(f's_mul_i32 s32, {sW}, 15360\ns_add_u32 s32, s32, 81920')
    g.w192_setup(4, 7, 's32')
    units = [f's_add_u32 s33, {soff0}, {kk*32*12288}' for kk in range(20)]
    reads = lambda kk: [(f'a[{(kk*3+t)*4+2*u}:{(kk*3+t)*4+2*u+1}]', t*32 + u*384) for t in range(3) for u in range(2)]
    g.wload(units, 3, 4, [srd]*20, 's32', 3072, 5, 7, reads)

def role_kv(g):
    g('L_kv:')
    g(f'''s_sub_u32 s40, {sX}, 4
    s_lshl_b32 s40, s40, 3
    s_and_b32 s30, {sIDX}, 7
    s_add_u32 s40, s40, s30
    s_lshr_b32 s41, {sIDX}, 3
    s_cmp_eq_u32 s41, 0
    s_cselect_b32 s12, s{P_WK}, s{P_WV}
    s_cselect_b32 s13, s{P_WK+1}, s{P_WV+1}
    s_cmp_eq_u32 s41, 2
    s_cselect_b32 s12, s{P_WQ}, s12
    s_cselect_b32 s13, s{P_WQ+1}, s13
    s_mov_b32 s14, {SZ_W}
    s_mov_b32 s15, 0x20000
    s_mul_i32 s42, s41, {VX-KX}
    s_add_u32 s42, s42, {KX}
    s_mul_i32 s43, s40, 384''')
    proj_prime(g, 0)
    g('v_lshlrev_b32 v10, 4, v0')
    g.prof(0)
    load_proj_weights(g, S1, 's43')
    g.prof(1)
    g(f'''s_mul_i32 s45, s40, 12288
    s_add_u32 s45, s45, s42
    s_mul_i32 s30, {sW}, 3072
    s_add_u32 s45, s45, s30
    s_lshl_b32 s30, s41, 5
    s_add_u32 s30, s30, s40''')
    g.flagaddr_own(12, None)
    g(f'v_mov_b32 v15, {sNON}\ns_mov_b32 s46, 0\ns_mov_b32 s47, {OOB}\ns_mov_b32 s50, 0')
    proj_start(g)
    PK = 80
    def stores(): return [f'buffer_store_dwordx4 v[{PK+4*i}:{PK+4*i+3}], v10, {WS}, s47 offen offset:{i*1024} sc1' for i in range(3)]
    NEARLY = g.cfg.get('nearly', 2)
    g('L_kv_loop:')
    for par in range(2):
        fill = {}
        cv = pack_frags(ACC[1-par], PK)
        for i in range(12): fill.setdefault(26 + i + i//2, []).append(cv[i])
        for i, st in enumerate(stores()):
            if not g.cfg.get('nost'): fill.setdefault(46 + 4*i, []).append(st)
        fill.setdefault(62, []).extend(['s_mov_b32 s47, s45', f's_add_u32 s45, s45, {32*12288}'])
        fill.setdefault(64, []).extend(['v_mov_b32 v14, s50', 's_max_u32 s50, s50, s46'])
        fill.setdefault(65, []).extend(['s_add_u32 s46, s46, 1'])
        proj_segment(g, par, False, fill, 3, [f'buffer_store_dwordx2 v[14:15], v12, {WS}, 0 offen sc1'])
        g(f's_cmp_le_u32 s46, {NEARLY}\ns_cbranch_scc1 L_kv_early{par}\nL_kv_back{par}:')
    g('s_cmp_lt_u32 s46, 64\ns_cbranch_scc1 L_kv_loop\ns_nop 4')
    for x in pack_frags(ACC[1], PK): g(x)
    for x in stores(): g(x)
    g('s_waitcnt vmcnt(0) lgkmcnt(0)'); g.flagstore(14, 12, 64)
    g('s_branch L_kv_done')
    for par in range(2):
        g(f'L_kv_early{par}:\ns_nop 6')
        for x in pack_frags(ACC[par], PK): g(x)
        for x in stores(): g(x)
        g('s_mov_b32 s50, s46\ns_waitcnt vmcnt(0)'); g.flagstore(14, 12, 's50')
        g(f's_branch L_kv_back{par}')
    g('L_kv_done:')
    g.prof(2)
    g('s_cmp_eq_u32 s41, 2')
    g('s_cbranch_scc1 L_end')
    g('s_branch ' + ('L_a3' if 'a3' in g.cfg['roles'] else 'L_end'))

def role_u(g):
    g('L_u:')
    g(f'''s_sub_u32 s40, {sX}, 4
    s_lshl_b32 s40, s40, 3
    s_and_b32 s30, {sIDX}, 7
    s_add_u32 s40, s40, s30
    s_mul_i32 s43, s40, {192*1280}''')
    g.srd(12, P_WO, SZ_W)
    g(f's_mul_i32 s32, {sW}, 15360\ns_add_u32 s32, s32, 32768')
    g.w640_setup(4, 9, 's32')
    def dst(E, n):
        w, t = divmod(E, 3)
        ks, o = (w, 2*t) if t < 2 else (4 + w//2, 2*(w % 2))
        b = (n*6 + ks)*4 + o
        return f'a[{b}:{b+1}]'
    units = [f's_add_u32 s33, s43, {E*16*1280}' for E in range(12)]
    g.wload(units, 5, 4, [S1]*12, 's32', 5120, 3, 9, lambda E: [(dst(E, n), n*32) for n in range(10)])
    g.prof(1)
    g(f'''v_lshlrev_b32 v10, 4, v0
    v_and_b32 v11, 3, v0
    v_lshlrev_b32 v11, 3, v11
    s_add_u32 s30, s40, {F_V}
    s_lshl_b32 s30, s30, 7
    v_add_u32 v11, s30, v11
    s_add_u32 s30, s40, {F_U}''')
    g.flagaddr_own(12, None)
    g(f'''v_mov_b32 v15, {sNON}
    s_mul_i32 s34, {sW}, 3072
    s_mul_i32 s44, s40, 12288
    s_add_u32 s44, s44, s34
    s_add_u32 s44, s44, {VX}
    s_mul_i32 s45, {sW}, {10*32768}
    s_lshl_b32 s30, s40, 10
    s_add_u32 s45, s45, s30
    s_add_u32 s45, s45, {UX}
    s_mov_b32 s46, 0''')
    def dma(buf): return [f's_add_u32 m0, s34, {buf*12288}'] + [f'buffer_load_dwordx4 v10, {WS}, s44 offen offset:{i*1024} sc1 lds' for i in range(3)]
    VA, AC, PK = (32, 80), 128, 144
    va = lambda b, m, ks: VA[b] + (m*6 + ks)*4
    def vreads(b):
        out = []
        for ks in range(6):
            for m in range(2):
                r = va(b, m, ks)
                if ks < 4: out.append(f'ds_read_b128 v[{r}:{r+3}], v10 offset:{b*12288 + ks*3072 + m*1024}')
                else: out += [f'ds_read_b64 v[{r+2*u}:{r+2*u+1}], v10 offset:{b*12288 + ((ks-4)*2+u)*3072 + 2048 + m*8}' for u in range(2)]
        return out
    g.flagwait(16, 11, 1)
    d = dma(0); g(d[0]); g('s_nop 0')
    for x in d[1:]: g(x)
    g('s_waitcnt vmcnt(0)\ns_barrier')
    for x in vreads(0): g(x)
    g.prof(3)
    def epi(n):
        d = AC + (n % 2)*8; p = PK + (n % 2)*4
        return [f'v_cvt_pk_bf16_f32 v{p+i}, v{d+2*i}, v{d+2*i+1}' for i in range(4)] + \
               [f'buffer_store_dwordx4 v[{p}:{p+3}], v10, {WS}, {"s48" if n == 9 else "s45"} offen sc1'] + (['s_add_u32 s45, s45, 32768'] if n < 9 else [])
    def mfs(par):
        mf = []
        for n in range(10):
            for ks in range(6):
                for m in range(2):
                    d = AC + (n % 2)*8 + m*4; r = va(par, m, ks)
                    mf.append(f'v_mfma_f32_16x16x32_bf16 v[{d}:{d+3}], v[{r}:{r+3}], a[{(n*6+ks)*4}:{(n*6+ks)*4+3}], ' + (f'v[{d}:{d+3}]' if ks else '0'))
        return mf
    g('s_waitcnt lgkmcnt(0)')
    fill = {}
    for n in range(9):
        for i, x in enumerate(epi(n)): fill.setdefault(12*(n+1) + 4 + i, []).append(x)
    emit_stream(g, mfs(0), fill)
    g(f's_mov_b32 s48, s45\ns_add_u32 s45, s45, {31*32768}\ns_add_u32 s44, s44, {32*12288}\ns_nop 4')
    for x in epi(9): g(x)
    g('s_waitcnt vmcnt(0)'); g.flagstore(14, 12, 1)
    g.flagwait(16, 11, 2)
    d = dma(1); g(d[0]); g('s_nop 0')
    for x in d[1:]: g(x)
    g(f's_add_u32 s44, s44, {32*12288}\ns_waitcnt vmcnt(0)\ns_barrier')
    for x in vreads(1): g(x)
    g.flagwait(16, 11, 3)
    d = dma(0); g(d[0]); g('s_nop 0')
    for x in d[1:]: g(x)
    g(f's_mov_b32 s46, 1\ns_mov_b32 s48, {OOB}\ns_branch L_u_odd')
    g('L_u_loop:')
    for par in range(2):
        if par == 1: g('L_u_odd:')
        fill = {}
        for n in range(-1, 9):
            for i, x in enumerate(epi(n % 10)): fill.setdefault(12*(n+1) + 4 + i, []).append(x)
        fill.setdefault(10, []).append(f'buffer_load_dwordx2 v[16:17], v11, {WS}, 0 offen sc1')
        fill.setdefault(12, []).extend(['s_add_u32 s47, s46, 3', 's_min_u32 s47, s47, 64'])
        fill.setdefault(13, []).extend([f's_add_u32 s44, s44, {32*12288}', 'v_mov_b32 v14, s46'])
        slow = f'L_u_slow{par}'; back = f'L_u_back{par}'
        fill.setdefault(58, []).extend(['s_waitcnt vmcnt(4)', 's_barrier'])
        fill.setdefault(59, []).extend([f'buffer_store_dwordx2 v[14:15], v12, {WS}, 0 offen sc1', f'v_cmp_ne_u32 vcc, {sNON}, v17'])
        fill.setdefault(60, []).extend(['v_cmp_gt_u32 s[28:29], s47, v16', 's_or_b64 vcc, vcc, s[28:29]', f's_cbranch_scc1 {slow}', f'{back}:'])
        d = dma(par)
        fill.setdefault(61, []).append(d[0])
        for i in range(3): fill.setdefault([62, 71, 74][i], []).append(d[1+i])
        pos = [p for p in range(75, 118) if p % 12 in (10, 11, 0, 1, 2, 3)]
        for i, x in enumerate(vreads(1-par)): fill.setdefault(pos[i], []).append(x)
        fill.setdefault(118, []).extend(['s_mov_b32 s48, s45', f's_add_u32 s45, s45, {31*32768}'])
        fill.setdefault(119, []).extend(['s_add_u32 s46, s46, 1'])
        g('s_waitcnt lgkmcnt(0)')
        emit_stream(g, mfs(par), fill)
    g('s_cmp_lt_u32 s46, 64\ns_cbranch_scc1 L_u_loop\ns_nop 5')
    for x in epi(9): g(x)
    g('s_waitcnt vmcnt(0) lgkmcnt(0)'); g.flagstore(14, 12, 64)
    g.prof(2)
    g('s_endpgm')
    for par in range(2):
        g(f'L_u_slow{par}:'); g.flagwait(16, 11, 's47'); g(f's_branch L_u_back{par}')

def gen(cfg):
    g = G(cfg)
    hdr = open('cdna_kernels/' + NAME + '.s.ref').read().split('\n')
    for l in hdr:
        if l.startswith('; Override'): break
        g.raw(l)
    g.raw('; @launch grid=(256,1,1) block=(256,1,1) lds=163840')
    g.raw('.amdgcn_target "amdgcn-amd-amdhsa--gfx950"')
    g.raw(kernel_header(NAME + '_kernel'))
    g(f'''s_cmp_ge_u32 s2, 256
    s_cbranch_scc1 L_end
    s_load_dwordx16 s[64:79], s[0:1], 0
    s_load_dwordx8 s[80:87], s[0:1], 64
    s_load_dwordx4 s[88:91], s[0:1], 96
    s_memrealtime s[92:93]
    s_getreg_b32 s30, hwreg(HW_REG_XCC_ID)
    v_lshrrev_b32 v1, 6, v0
    v_and_b32 v0, 63, v0
    s_mov_b32 {sSPIN}, 0
    v_readfirstlane_b32 {sW}, v1
    s_waitcnt lgkmcnt(0)''')
    g.srd(8, P_WS, 0x10000000); g.srd(20, P_X, SZ_X); g.srd(24, P_DBG, 256)
    g.srd(12, P_X, 0); g.srd(16, P_X, 0)
    g(f'''v_mov_b32 v1, 0
    s_or_b32 s31, s2, {sW}
    s_cmp_eq_u32 s31, 0
    s_cbranch_scc0 L_boot
    s_and_b32 s30, s30, 7
    s_or_b32 s30, s30, 0x100
    v_mov_b32 v2, s30
    v_mov_b32 v3, s92
    buffer_store_dwordx2 v[2:3], v1, {S3}, 0 offen sc1
    L_boot:
    buffer_load_dwordx2 v[2:3], v1, {S3}, 0 offen sc1''')
    g.spin()
    g(f'''s_waitcnt vmcnt(0)
    v_readfirstlane_b32 s30, v2
    v_readfirstlane_b32 {sNON}, v3
    s_cmp_eq_u32 s30, 0
    s_cbranch_scc1 L_boot
    s_add_u32 {sX}, s2, s30
    s_and_b32 {sX}, {sX}, 7
    s_lshr_b32 {sIDX}, s2, 3''')
    R = cfg['roles']
    tgt = lambda r: f'L_{r}' if r in R else 'L_end'
    g(f'''s_cmp_ge_u32 {sX}, 4
    s_cbranch_scc1 L_disp_hi
    s_cmp_lt_u32 {sIDX}, 8
    s_cbranch_scc1 {tgt('a')}
    s_cmp_lt_u32 {sIDX}, 16
    s_cbranch_scc1 {tgt('b')}
    s_cmp_lt_u32 {sIDX}, 26
    s_cbranch_scc1 {tgt('r')}
    s_cmp_lt_u32 {sIDX}, 30
    s_cbranch_scc1 {tgt('f')}
    s_branch {tgt('a1')}
    L_disp_hi:
    s_cmp_lt_u32 {sIDX}, 24
    s_cbranch_scc1 {tgt('kv')}
    s_branch {tgt('u')}
    L_abort:''')
    g.srd(24, P_DBG, 256)
    g(f'''s_mov_b64 exec, -1
    s_waitcnt vmcnt(0) lgkmcnt(0)
    s_lshl_b32 s30, {sX}, 8
    s_or_b32 s30, s30, {sIDX}
    s_or_b32 s30, s30, 0xab0000
    v_mov_b32 v1, 8
    v_mov_b32 v2, s30
    buffer_store_dword v2, v1, {S3}, 0 offen sc1
    L_end:
    s_endpgm''')
    import roles2
    fns = dict(kv=role_kv, u=role_u); fns.update(roles2.FNS)
    for r in ['a', 'b', 'r', 'kv', 'u', 'f', 'a1', 'a3']:
        if r in R: fns[r](g)
    g.raw(kernel_desc(NAME + '_kernel', vgpr=512, sgpr=102, accum=256, kernarg=112))
    return g.text()
ALL = ['a', 'b', 'r', 'kv', 'u', 'f', 'a1', 'a3']
if __name__ == '__main__':
    import hazard, json
    cfg = dict(roles=ALL)
    out = sys.argv[1] if len(sys.argv) > 1 else 'cdna_kernels/' + NAME + '.s'
    if len(sys.argv) > 2: cfg.update(json.loads(sys.argv[2]))
    t = gen(cfg)
    e = hazard.check(t)
    for x in e: print('HAZARD line %d -> %d need %d have %d: %s  ==>  %s' % x)
    open(out, 'w').write(t)
    print('wrote', out, len(t), 'bytes', len(e), 'hazards')
```
